```python
import torch

def _softmax(x, axis=-1):
    return torch.softmax(x, dim=axis)
def _gelu(x):
    return torch.nn.functional.gelu(x, approximate="tanh")
def _silu(x):
    return torch.nn.functional.silu(x)
def _sigmoid(x):
    return torch.sigmoid(x)
def _layernorm(x, axis=-1, eps=1e-5):
    m = x.mean(dim=axis, keepdim=True)
    v = x.var(dim=axis, keepdim=True, unbiased=False)
    return (x - m) / torch.sqrt(v + eps)
def _scatter_add(tgt, idx, src, axis=0):
    return tgt.clone().index_add_(axis, idx, src)
def _segment_sum(src, seg, n):
    out = torch.zeros((n,) + src.shape[1:], dtype=src.dtype)
    return out.index_add_(0, seg, src)
def _pad(x, pw):
    flat = tuple(v for pair in reversed(pw) for v in pair)
    return torch.nn.functional.pad(x, flat)

kernel_name = 'gated_mix__gqa_block_cached__glu_gated_geglu__decode'

def setup_inputs():

    _w = (lambda a: (lambda t: t.to(torch.bfloat16) if t.is_floating_point() else t)(torch.as_tensor(a)))
    def _A_setup():
        B, Sq, D = 2, 1, 576
        Hq, Hkv, Sk, Dh = 32, 16, 32768, 128
        assert Hq % Hkv == 0, (Hq, Hkv)
        return {
            "x": _w((lambda *s: torch.randn(*s, dtype=torch.bfloat16) * 0.05)(B, Sq, D)),
            "k_cache": _w((lambda *s: torch.randn(*s, dtype=torch.bfloat16) * 6.4)(B, Hkv, Sk, Dh)),
            "v_cache": _w((lambda *s: torch.randn(*s, dtype=torch.bfloat16) * 0.05)(B, Hkv, Sk, Dh)),
            "wq": _w((lambda *s: torch.randn(*s, dtype=torch.bfloat16) * 6.4)(D, Hq * Dh) * (D ** -0.5)),
            "wo": _w((lambda *s: torch.randn(*s, dtype=torch.bfloat16) * 0.05)(Hq * Dh, D) * ((Hq * Dh) ** -0.5)),
        }
    _A_in = _A_setup()

    def _B_setup():
        B, S, Dm, Df = 2, 1, 576, 4608
        return {
            "x": _w((lambda *s: torch.randn(*s, dtype=torch.bfloat16) * 0.05)(B, S, Dm)),
            "w_gate": _w((lambda *s: torch.randn(*s, dtype=torch.bfloat16) * 0.4)(Dm, Df) * (Dm ** -0.5)),
            "w_up": _w((lambda *s: torch.randn(*s, dtype=torch.bfloat16) * 0.4)(Dm, Df) * (Dm ** -0.5)),
            "w_down": _w((lambda *s: torch.randn(*s, dtype=torch.bfloat16) * 0.4)(Df, Dm) * (Df ** -0.5)),
        }
    _B_in = _B_setup()

    return {
        "A_x": _A_in["x"],
        "A_k_cache": _A_in["k_cache"],
        "A_v_cache": _A_in["v_cache"],
        "A_wq": _A_in["wq"],
        "A_wo": _A_in["wo"],
        "B_x": _B_in["x"],
        "B_w_gate": _B_in["w_gate"],
        "B_w_up": _B_in["w_up"],
        "B_w_down": _B_in["w_down"],
        "gate_w": _w((lambda *s: torch.randn(*s, dtype=torch.bfloat16) * 0.05)(576) * 16.0),
    }

def reference(A_x, A_k_cache, A_v_cache, A_wq, A_wo, B_x, B_w_gate, B_w_up, B_w_down, gate_w):
    def _A_ref(x, k_cache, v_cache, wq, wo):
        B, Sq, D = x.shape
        Hq, Dh = 32, 128
        Hkv = k_cache.shape[1]
        rep = Hq // Hkv
        q = (lambda x, *d: x.permute(*d))((x @ wq).reshape(B, Sq, Hq, Dh), 0, 2, 1, 3)
        k = (lambda x, n, axis: torch.repeat_interleave(x, n, dim=axis))(k_cache, rep, axis=1)
        v = (lambda x, n, axis: torch.repeat_interleave(x, n, dim=axis))(v_cache, rep, axis=1)
        scores = torch.einsum("bhqd,bhkd->bhqk", q, k) * (Dh ** -0.5)
        p = _softmax(scores, axis=-1)
        o = torch.einsum("bhqk,bhkd->bhqd", p, v)
        return (lambda x, *d: x.permute(*d))(o, 0, 2, 1, 3).reshape(B, Sq, Hq * Dh) @ wo

    def _B_ref(x, w_gate, w_up, w_down):
        g = torch.einsum("bsd,df->bsf", x, w_gate)
        u = torch.einsum("bsd,df->bsf", x, w_up)
        h = _gelu(g) * u
        return torch.einsum("bsf,fd->bsd", h, w_down)

    x = A_x
    g = _sigmoid((x * gate_w).sum(-1, keepdims=True))
    a = _A_ref(x, A_k_cache, A_v_cache, A_wq, A_wo)
    b = _B_ref(x, B_w_gate, B_w_up, B_w_down)
    return g * a + (1 - g) * b
```

```python
import re
import struct

TRANS = {"v_exp_f32", "v_log_f32", "v_rcp_f32", "v_rsq_f32", "v_sqrt_f32", "v_sin_f32", "v_cos_f32"}

_REG = re.compile(r"\b([vsa])\[(\d+):(\d+)\]|\b([vsa])(\d+)\b|\b(vcc|exec|m0)\b")


def f32hex(x):
    return "0x%08x" % struct.unpack("<I", struct.pack("<f", x))[0]


def regs_of(text):
    out = []
    for m in _REG.finditer(text):
        if m.group(1):
            for i in range(int(m.group(2)), int(m.group(3)) + 1):
                out.append(m.group(1) + str(i))
        elif m.group(4):
            out.append(m.group(4) + m.group(5))
        else:
            out.append(m.group(6))
    return out


class Ins:
    __slots__ = ("mn", "dst", "src", "kind", "slots", "src2only")


class Asm:
    def __init__(self):
        self.lines = []
        self.hist = []

    def raw(self, text):
        self.lines.append(text)

    def comment(self, text):
        self.lines.append("    ; " + text)

    def label(self, name):
        self.lines.append(name + ":")
        self.hist = []

    def reset(self):
        self.hist = []

    def _parse(self, text):
        t = text.strip()
        mn = t.split()[0]
        rest = t[len(mn):]
        ops = [o.strip() for o in rest.split(",")] if rest.strip() else []
        ins = Ins()
        ins.mn = mn
        ins.slots = 1
        ins.src2only = set()
        kind = "other"
        dst, src = [], []
        if mn.startswith("s_nop"):
            ins.slots = int(t.split()[1], 0) + 1
            kind = "nop"
        elif mn.startswith("v_"):
            base = mn.replace("_e32", "").replace("_e64", "").replace("_dpp", "")
            kind = "valu"
            if base in TRANS:
                kind = "trans"
            if base.startswith("v_dot"):
                kind = "dot"
            if mn.endswith("_dpp") or "quad_perm" in t or "row_" in t:
                kind = "dpp"
            if base.startswith("v_mfma"):
                kind = "mfma"
            dst = regs_of(ops[0]) if ops else []
            for o in ops[1:]:
                o2 = re.sub(r"(quad_perm|op_sel_hi|op_sel|row_mask|bank_mask|row_ror|row_shr|row_shl|row_bcast|offset|clamp)\S*", "", o)
                src += regs_of(o2)
            if base in ("v_fmac_f32", "v_dot2c_f32_bf16", "v_permlane32_swap_b32", "v_permlane16_swap_b32"):
                src += dst
            if base.startswith("v_cmp") and not ops[0].startswith("s["):
                dst = ["vcc"]
                src = []
                for o in ops:
                    if o.strip() == "vcc":
                        continue
                    src += regs_of(o)
            if base in ("v_add_co_u32", "v_sub_co_u32", "v_addc_co_u32"):
                dst = regs_of(ops[0]) + ["vcc"]
                src = []
                for o in ops[2:]:
                    src += regs_of(o)
            if kind == "dot" and len(ops) == 4:
                s2 = set(regs_of(ops[3]))
                others = set(regs_of(ops[1])) | set(regs_of(ops[2]))
                ins.src2only = s2 - others
        elif mn.startswith(("global_load", "buffer_load")):
            kind = "vmem"
            dst = regs_of(ops[0])
            for o in ops[1:]:
                src += regs_of(o)
        elif mn.startswith(("global_store", "buffer_store", "global_atomic", "buffer_atomic")):
            kind = "vstore"
            for o in ops:
                src += regs_of(o)
        elif mn.startswith("ds_"):
            kind = "lds"
            if mn.startswith(("ds_read", "ds_bpermute", "ds_swizzle", "ds_permute")):
                dst = regs_of(ops[0])
                for o in ops[1:]:
                    src += regs_of(o)
            else:
                for o in ops:
                    src += regs_of(o)
        elif mn.startswith("s_"):
            kind = "salu"
            if ops:
                dst = regs_of(ops[0])
                for o in ops[1:]:
                    src += regs_of(o)
        ins.kind = kind
        ins.dst = set(dst)
        ins.src = set(src)
        return ins

    def _need(self, ins):
        need = 0
        dist = 0
        for p in reversed(self.hist):
            if dist >= 8:
                break
            req = 0
            pv = p.kind in ("valu", "trans", "dot", "dpp")
            if pv:
                wv = {r for r in p.dst if r.startswith("v")}
                ws = {r for r in p.dst if r.startswith("s") or r == "vcc"}
                rd = ins.src
                if ins.kind == "dpp" and wv & rd:
                    req = max(req, 2)
                if p.kind == "trans" and wv & (rd | ins.dst) and ins.kind != "trans":
                    req = max(req, 1)
                if p.kind == "trans" and wv & rd and ins.kind == "trans":
                    req = max(req, 1)
                if p.kind == "dot" and wv & (rd | ins.dst):
                    same = ins.kind == "dot" and ins.mn == p.mn and (wv & rd) <= ins.src2only
                    if not same:
                        req = max(req, 3)
                if ws & rd:
                    if ins.kind in ("valu", "trans", "dot", "dpp"):
                        req = max(req, 2)
                    if ins.kind in ("vmem", "vstore"):
                        req = max(req, 5)
                    if ins.kind == "salu":
                        req = max(req, 1)
                if ins.mn.startswith(("v_readfirstlane", "v_readlane")) and wv & rd:
                    req = max(req, 1)
                if ins.mn.startswith("v_permlane") and wv & rd:
                    req = max(req, 2)
                if ins.kind == "mfma" and wv & rd:
                    req = max(req, 2)
            if p.kind == "vstore" and ("x4" in p.mn or "x3" in p.mn):
                if ins.kind in ("valu", "trans", "dot", "dpp") and (p.src & ins.dst):
                    req = max(req, 2)
            if p.kind == "salu" and "m0" in p.dst and ins.kind in ("vmem", "lds"):
                req = max(req, 1)
            need = max(need, req - dist)
            dist += p.slots
        return need

    def emit(self, text):
        ins = self._parse(text)
        n = self._need(ins)
        if n > 0:
            nop = self._parse("s_nop %d" % (n - 1))
            self.lines.append("    s_nop %d" % (n - 1))
            self.hist.append(nop)
        self.lines.append("    " + text.strip())
        self.hist.append(ins)
        if len(self.hist) > 16:
            self.hist = self.hist[-16:]

    def __call__(self, text):
        for ln in text.strip().split("\n"):
            ln = ln.strip()
            if not ln:
                continue
            if ln.startswith(";"):
                self.comment(ln[1:].strip())
            elif ln.endswith(":"):
                self.label(ln[:-1])
            else:
                self.emit(ln)

    def text(self):
        return "\n".join(self.lines) + "\n"
```

```python
import math
import os
import sys

sys.path.insert(0, os.path.dirname(os.path.abspath(__file__)))
from asmdsl import Asm, f32hex

NAME = "gated_mix__gqa_block_cached__glu_gated_geglu__decode"
OUT = os.path.join(os.path.dirname(os.path.abspath(__file__)), "..", "cdna_kernels", NAME + ".s")

QPART = 0x0
APART = 0x20000
AML = 0x60000
FFNP = 0x80000
OPART = 0x100000

C_EXP = math.log2(math.e) / math.sqrt(128.0)
KA = dict(x=0, k=8, v=16, wq=24, wo=32, bx=40, wg=48, wu=56, wd=64, gw=72, out=80, dbg=88, ws=96)


def kd(a, name, vgpr, sgpr=64):
    acc = (vgpr + 3) // 4 * 4
    a.raw(f""".section .rodata,"a"
.p2align 6
.amdhsa_kernel {name}
  .amdhsa_next_free_vgpr {vgpr}
  .amdhsa_next_free_sgpr {sgpr}
  .amdhsa_accum_offset {acc}
  .amdhsa_group_segment_fixed_size 0
  .amdhsa_kernarg_size 104
  .amdhsa_user_sgpr_count 2
  .amdhsa_user_sgpr_kernarg_segment_ptr 1
  .amdhsa_system_sgpr_workgroup_id_x 1
.end_amdhsa_kernel
.text""")


def kstart(a, name):
    a.raw(f""".globl {name}
.p2align 8
.type {name},@function
{name}:""")
    a.reset()


def unpack8(a, src, dst):
    for i in range(4):
        a(f"v_lshlrev_b32 v{dst+2*i}, 16, v{src+i}")
        a(f"v_and_b32 v{dst+2*i+1}, 0xffff0000, v{src+i}")


def round_bf16(a, reg, tmp):
    a(f"v_cvt_pk_bf16_f32 v{tmp}, v{reg}, v{reg}")
    a(f"v_and_b32 v{reg}, 0xffff0000, v{tmp}")


def gen_qproj(a):
    name = "qproj_kernel"
    kstart(a, name)
    a(f"""
    s_cmp_ge_u32 s2, 192
    s_cbranch_scc1 Lq_end
    s_load_dwordx2 s[4:5], s[0:1], {KA['x']}
    s_load_dwordx2 s[6:7], s[0:1], {KA['wq']}
    s_load_dwordx2 s[8:9], s[0:1], {KA['ws']}
    s_and_b32 s10, s2, 63
    s_lshr_b32 s11, s2, 6
    v_and_b32 v1, 63, v0
    v_lshrrev_b32 v2, 6, v0
    v_lshrrev_b32 v3, 3, v1
    v_and_b32 v4, 7, v1
    v_mul_u32_u24 v5, 48, v2
    v_add_u32 v5, v5, v3
    s_mul_i32 s12, s11, 192
    v_add_u32 v5, s12, v5
    v_lshlrev_b32 v6, 13, v5
    v_lshlrev_b32 v7, 4, v4
    v_add_u32 v6, v6, v7
    s_lshl_b32 s13, s10, 7
    v_add_u32 v6, s13, v6
    v_lshlrev_b32 v7, 1, v5
    s_waitcnt lgkmcnt(0)
    """)
    for i in range(6):
        a(f"global_load_dwordx4 v[{16+4*i}:{19+4*i}], v6, s[6:7]")
        a("v_add_u32 v6, 0x10000, v6")
        a(f"global_load_ushort v{40+2*i}, v7, s[4:5] offset:{16*i}")
        a(f"global_load_ushort v{41+2*i}, v7, s[4:5] offset:{1152+16*i}")
    for i in range(16):
        a(f"v_mov_b32 v{60+i}, 0")
    for i in range(6):
        a(f"s_waitcnt vmcnt({3*(5-i)})")
        a(f"v_lshlrev_b32 v{40+2*i}, 16, v{40+2*i}")
        a(f"v_lshlrev_b32 v{41+2*i}, 16, v{41+2*i}")
        unpack8(a, 16 + 4 * i, 52)
        for b in range(2):
            for j in range(8):
                a(f"v_fmac_f32 v{60+8*b+j}, v{40+2*i+b}, v{52+j}")
    a("v_lshlrev_b32 v8, 6, v0")
    for i in range(4):
        a(f"ds_write_b128 v8, v[{60+4*i}:{63+4*i}] offset:{16*i}")
    a("""
    s_waitcnt lgkmcnt(0)
    s_barrier
    v_cmp_gt_u32 vcc, 128, v0
    s_and_saveexec_b64 s[14:15], vcc
    s_cbranch_execz Lq_end
    v_lshrrev_b32 v9, 6, v0
    v_and_b32 v10, 63, v0
    v_lshrrev_b32 v11, 3, v10
    v_and_b32 v12, 7, v10
    v_lshlrev_b32 v11, 6, v11
    v_lshl_add_u32 v12, v9, 3, v12
    v_lshl_add_u32 v11, v12, 2, v11
    v_mov_b32 v13, 0
    """)
    for n in range(32):
        a(f"ds_read_b32 v{20+n}, v11 offset:{512*n}")
    a("s_waitcnt lgkmcnt(0)")
    for n in range(32):
        a(f"v_add_f32 v13, v13, v{20+n}")
    a("""
    s_lshl_b32 s16, s11, 1
    v_add_u32 v14, s16, v9
    v_lshlrev_b32 v14, 12, v14
    v_add_u32 v14, v14, v10
    s_lshl_b32 s17, s10, 6
    v_add_u32 v14, s17, v14
    v_lshlrev_b32 v14, 2, v14
    """)
    a(f"global_store_dword v14, v13, s[8:9] offset:{QPART}")
    a.label("Lq_end")
    a("s_endpgm")
    kd(a, name, 80)


KB = 32
VB = 64
Q0, Q1 = 96, 100
SS = 104
VF = 112
O0, O1 = 8, 16
M0, M1, L0, L1 = 24, 25, 26, 27
T0, T1, CR0, CR1 = 28, 29, 30, 31
MC0, MC1 = 120, 121
NTILE = 32
QR = [list(range(8, 24)), list(range(104, 120)), list(range(24, 32)) + list(range(120, 128))]


def attn_issue(a, par):
    kb = KB + 16 * par
    vb = VB + 16 * par
    for j in range(4):
        a(f"global_load_dwordx4 v[{kb+4*j}:{kb+4*j+3}], v2, s[4:5] offset:{1024*j}")
    for j in range(4):
        a(f"global_load_dwordx4 v[{vb+4*j}:{vb+4*j+3}], v2, s[6:7] offset:{1024*j}")
    a("""
    s_add_u32 s4, s4, 4096
    s_addc_u32 s5, s5, 0
    s_add_u32 s6, s6, 4096
    s_addc_u32 s7, s7, 0
    """)


def attn_tile(a, par, waitk, waitv, issue):
    kb = KB + 16 * par
    vb = VB + 16 * par
    a(f"s_waitcnt vmcnt({waitk})")
    for j in range(4):
        for h in range(2):
            q = Q0 if h == 0 else Q1
            s = SS + 2 * j + h
            a(f"v_dot2_f32_bf16 v{s}, v{kb+4*j}, v{q}, 0")
            for i in range(1, 4):
                a(f"v_dot2_f32_bf16 v{s}, v{kb+4*j+i}, v{q+i}, v{s}")
    for stage in ("quad_perm:[1,0,3,2]", "quad_perm:[2,3,0,1]", "row_ror:4", "row_ror:8"):
        for n in range(8):
            a(f"v_add_f32_dpp v{SS+n}, v{SS+n}, v{SS+n} {stage} row_mask:0xf bank_mask:0xf")
    for h, (m, t, cr, mc, l, o) in enumerate(((M0, T0, CR0, MC0, L0, O0), (M1, T1, CR1, MC1, L1, O1))):
        a(f"v_max3_f32 v{t}, v{SS+h}, v{SS+2+h}, v{SS+4+h}")
        a(f"v_max3_f32 v{t}, v{t}, v{SS+6+h}, v{m}")
        a(f"v_sub_f32 v{cr}, v{m}, v{t}")
        a(f"v_mul_f32 v{cr}, s20, v{cr}")
        a(f"v_mul_f32 v{mc}, s20, v{t}")
        a(f"v_exp_f32 v{cr}, v{cr}")
        a(f"v_mov_b32 v{m}, v{t}")
        for j in range(4):
            a(f"v_fma_f32 v{SS+2*j+h}, v{SS+2*j+h}, s20, -v{mc}")
        for j in range(4):
            a(f"v_exp_f32 v{SS+2*j+h}, v{SS+2*j+h}")
        a(f"v_mul_f32 v{l}, v{l}, v{cr}")
        for i in range(8):
            a(f"v_mul_f32 v{o+i}, v{o+i}, v{cr}")
        a(f"v_add_f32 v{t}, v{SS+h}, v{SS+2+h}")
        a(f"v_add_f32 v{l}, v{l}, v{t}")
        a(f"v_add_f32 v{t}, v{SS+4+h}, v{SS+6+h}")
        a(f"v_add_f32 v{l}, v{l}, v{t}")
    a(f"s_waitcnt vmcnt({waitv})")
    for j in range(4):
        unpack8(a, vb + 4 * j, VF)
        for i in range(8):
            a(f"v_fmac_f32 v{O0+i}, v{SS+2*j}, v{VF+i}")
            a(f"v_fmac_f32 v{O1+i}, v{SS+2*j+1}, v{VF+i}")
    if issue:
        attn_issue(a, par)


def gelu_tanh(a, x, out, t1, t2):
    a(f"v_mul_f32 v{t1}, v{x}, v{x}")
    a(f"v_mul_f32 v{t1}, v{t1}, v{x}")
    a(f"v_fma_f32 v{t1}, v{t1}, s22, v{x}")
    a(f"v_mul_f32 v{t1}, s21, v{t1}")
    a(f"v_exp_f32 v{t1}, v{t1}")
    a(f"v_add_f32 v{t1}, 1.0, v{t1}")
    a(f"v_rcp_f32 v{t1}, v{t1}")
    a(f"v_fma_f32 v{t2}, v{t1}, -2.0, 1.0")
    a(f"v_add_f32 v{t2}, 1.0, v{t2}")
    a(f"v_mul_f32 v{t2}, 0.5, v{t2}")
    a(f"v_mul_f32 v{out}, v{x}, v{t2}")


def gen_attn(a):
    name = NAME + "_kernel"
    kstart(a, name)
    a(f"""
    s_cmp_ge_u32 s2, 328
    s_cbranch_scc1 La_end
    s_load_dwordx2 s[8:9], s[0:1], {KA['ws']}
    s_cmp_ge_u32 s2, 256
    s_cbranch_scc1 Lffn
    s_load_dwordx2 s[4:5], s[0:1], {KA['k']}
    s_load_dwordx2 s[6:7], s[0:1], {KA['v']}
    v_and_b32 v1, 63, v0
    v_lshlrev_b32 v2, 4, v1
    v_lshrrev_b32 v3, 6, v0
    v_readfirstlane_b32 s10, v3
    s_lshr_b32 s11, s2, 3
    s_and_b32 s12, s2, 7
    s_lshl_b32 s13, s11, 23
    s_lshl_b32 s14, s12, 20
    s_add_u32 s13, s13, s14
    s_lshl_b32 s14, s10, 17
    s_add_u32 s13, s13, s14
    s_mov_b32 s20, {f32hex(C_EXP)}
    s_lshr_b32 s15, s11, 4
    s_and_b32 s16, s11, 15
    s_lshl_b32 s15, s15, 14
    s_lshl_b32 s16, s16, 10
    s_add_u32 s15, s15, s16
    v_and_b32 v4, 15, v1
    v_lshlrev_b32 v4, 5, v4
    s_waitcnt lgkmcnt(0)
    s_add_u32 s4, s4, s13
    s_addc_u32 s5, s5, 0
    s_add_u32 s6, s6, s13
    s_addc_u32 s7, s7, 0
    s_add_u32 s18, s8, s15
    s_addc_u32 s19, s9, 0
    """)
    for ks in range(3):
        for h in range(2):
            for half in range(2):
                r = QR[ks][h * 8 + half * 4]
                a(f"global_load_dwordx4 v[{r}:{r+3}], v4, s[18:19] offset:{QPART + h*512 + half*16}")
        if ks < 2:
            a("v_add_u32 v4, 0x8000, v4")
    attn_issue(a, 0)
    attn_issue(a, 1)
    a("s_waitcnt vmcnt(16)")
    for n in range(16):
        a(f"v_add_f32 v{QR[0][n]}, v{QR[0][n]}, v{QR[1][n]}")
    for n in range(16):
        a(f"v_add_f32 v{QR[0][n]}, v{QR[0][n]}, v{QR[2][n]}")
    for h in range(2):
        for i in range(4):
            q = Q0 if h == 0 else Q1
            a(f"v_cvt_pk_bf16_f32 v{q+i}, v{QR[0][h*8+2*i]}, v{QR[0][h*8+2*i+1]}")
    for i in range(8):
        a(f"v_mov_b32 v{O0+i}, 0")
        a(f"v_mov_b32 v{O1+i}, 0")
    a(f"""
    v_mov_b32 v{M0}, 0xff800000
    v_mov_b32 v{M1}, 0xff800000
    v_mov_b32 v{L0}, 0
    v_mov_b32 v{L1}, 0
    s_mov_b32 s23, 0
    """)
    a.label("La_loop")
    attn_tile(a, 0, 12, 8, True)
    attn_tile(a, 1, 12, 8, True)
    a(f"""
    s_add_u32 s23, s23, 2
    s_cmp_lt_u32 s23, {NTILE-2}
    s_cbranch_scc1 La_loop
    """)
    attn_tile(a, 0, 12, 8, False)
    attn_tile(a, 1, 4, 0, False)
    a("""
    v_lshrrev_b32 v4, 4, v0
    v_lshlrev_b32 v5, 9, v4
    v_and_b32 v6, 15, v0
    v_lshl_add_u32 v5, v6, 5, v5
    """)
    for i in range(2):
        a(f"ds_write_b128 v5, v[{O0+4*i}:{O0+4*i+3}] offset:{16*i}")
        a(f"ds_write_b128 v5, v[{O1+4*i}:{O1+4*i+3}] offset:{16384+16*i}")
    a(f"""
    v_lshlrev_b32 v6, 3, v4
    v_mov_b32 v{T0}, v{M0}
    v_mov_b32 v{T1}, v{L0}
    ds_write_b64 v6, v[{T0}:{T1}] offset:32768
    v_mov_b32 v{CR0}, v{M1}
    v_mov_b32 v{CR1}, v{L1}
    ds_write_b64 v6, v[{CR0}:{CR1}] offset:{32768+256}
    s_waitcnt lgkmcnt(0)
    s_barrier
    s_cmp_ge_u32 s10, 4
    s_cbranch_scc1 La_end
    v_lshrrev_b32 v4, 7, v0
    v_and_b32 v5, 127, v0
    v_lshlrev_b32 v6, 8, v4
    v_lshlrev_b32 v7, 14, v4
    v_lshl_add_u32 v7, v5, 2, v7
    """)
    for n in range(32):
        a(f"ds_read_b64 v[{32+2*n}:{33+2*n}], v6 offset:{32768+8*n}")
    a("s_waitcnt lgkmcnt(0)")
    a("v_max_f32 v8, v32, v34")
    for n in range(2, 32):
        a(f"v_max_f32 v8, v8, v{32+2*n}")
    a("v_mul_f32 v9, s20, v8")
    for n in range(32):
        a(f"v_fma_f32 v{32+2*n}, v{32+2*n}, s20, -v9")
    for n in range(32):
        a(f"v_exp_f32 v{32+2*n}, v{32+2*n}")
    for n in range(32):
        a(f"ds_read_b32 v{96+n}, v7 offset:{512*n}")
    a("v_mov_b32 v10, 0")
    a("v_mov_b32 v11, 0")
    for n in range(32):
        a(f"v_fmac_f32 v10, v{32+2*n}, v{33+2*n}")
    a("s_waitcnt lgkmcnt(0)")
    for n in range(32):
        a(f"v_fmac_f32 v11, v{32+2*n}, v{96+n}")
    a(f"""
    s_lshl_b32 s24, s2, 10
    s_add_u32 s24, s24, {APART}
    v_lshlrev_b32 v12, 2, v0
    v_add_u32 v12, s24, v12
    global_store_dword v12, v11, s[8:9]
    s_lshl_b32 s24, s2, 4
    s_add_u32 s24, s24, {AML}
    v_lshlrev_b32 v12, 3, v4
    v_add_u32 v12, s24, v12
    v_mov_b32 v14, v8
    v_mov_b32 v15, v10
    v_cmp_eq_u32 vcc, 0, v5
    s_and_saveexec_b64 s[26:27], vcc
    global_store_dwordx2 v12, v[14:15], s[8:9]
    s_mov_b64 exec, s[26:27]
    s_branch La_end
    """)
    W, X, ACC, UNP = 32, 68, 88, 120
    GU, HS = 65536, 66560
    a.label("Lffn")
    a(f"""
    s_load_dwordx2 s[4:5], s[0:1], {KA['x']}
    s_load_dwordx2 s[6:7], s[0:1], {KA['wg']}
    s_load_dwordx2 s[10:11], s[0:1], {KA['wu']}
    s_load_dwordx2 s[12:13], s[0:1], {KA['wd']}
    s_sub_u32 s14, s2, 256
    v_and_b32 v1, 63, v0
    v_lshrrev_b32 v2, 6, v0
    v_lshrrev_b32 v3, 3, v1
    v_and_b32 v4, 7, v1
    v_mul_u32_u24 v5, 72, v2
    v_add_u32 v5, v5, v3
    v_mul_u32_u24 v6, 9216, v5
    v_lshl_add_u32 v6, v4, 4, v6
    s_lshl_b32 s15, s14, 7
    v_add_u32 v6, s15, v6
    v_lshlrev_b32 v7, 1, v5
    s_mov_b32 s21, {f32hex(2.0*math.sqrt(2.0/math.pi)*math.log2(math.e))}
    s_mov_b32 s22, {f32hex(0.044715)}
    s_waitcnt lgkmcnt(0)
    """)
    for i in range(32):
        a(f"v_mov_b32 v{ACC+i}, 0")
    for mat, sb in ((0, "s[6:7]"), (1, "s[10:11]")):
        a("v_mov_b32 v8, v6")
        for i in range(9):
            a(f"global_load_dwordx4 v[{W+4*i}:{W+4*i+3}], v8, {sb}")
            a(f"v_add_u32 v8, {8*9216}, v8")
            if mat == 0:
                a(f"global_load_ushort v{X+2*i}, v7, s[4:5] offset:{16*i}")
                a(f"global_load_ushort v{X+2*i+1}, v7, s[4:5] offset:{1152+16*i}")
        for i in range(9):
            a(f"s_waitcnt vmcnt({(3 if mat == 0 else 1)*(8-i)})")
            if mat == 0:
                a(f"v_lshlrev_b32 v{X+2*i}, 16, v{X+2*i}")
                a(f"v_lshlrev_b32 v{X+2*i+1}, 16, v{X+2*i+1}")
            unpack8(a, W + 4 * i, UNP)
            for b in range(2):
                for j in range(8):
                    a(f"v_fmac_f32 v{ACC+16*mat+8*b+j}, v{X+2*i+b}, v{UNP+j}")
    a("v_lshlrev_b32 v8, 7, v0")
    for i in range(8):
        a(f"ds_write_b128 v8, v[{ACC+4*i}:{ACC+4*i+3}] offset:{16*i}")
    a("""
    s_waitcnt lgkmcnt(0)
    s_barrier
    s_cmp_ge_u32 s10, 4
    """)
    a.lines.pop()
    a("""
    v_readfirstlane_b32 s16, v2
    s_cmp_ge_u32 s16, 4
    s_cbranch_scc1 Lffn_b1
    v_lshrrev_b32 v9, 6, v0
    v_and_b32 v10, 63, v0
    v_lshrrev_b32 v11, 3, v10
    v_and_b32 v12, 7, v10
    v_lshlrev_b32 v11, 7, v11
    v_lshl_add_u32 v11, v9, 5, v11
    v_lshl_add_u32 v11, v12, 2, v11
    v_mov_b32 v13, 0
    """)
    for half in range(2):
        for n in range(32):
            a(f"ds_read_b32 v{32+n}, v11 offset:{1024*(32*half+n)}")
        a("s_waitcnt lgkmcnt(0)")
        for n in range(32):
            a(f"v_add_f32 v13, v13, v{32+n}")
    round_bf16(a, 13, 14)
    a(f"""
    v_lshlrev_b32 v14, 2, v0
    v_add_u32 v14, {GU}, v14
    ds_write_b32 v14, v13
    """)
    a.label("Lffn_b1")
    a(f"""
    s_waitcnt lgkmcnt(0)
    s_barrier
    s_cmp_ge_u32 s16, 2
    s_cbranch_scc1 Lffn_b2
    v_lshlrev_b32 v14, 2, v0
    v_add_u32 v14, {GU}, v14
    ds_read_b32 v15, v14
    ds_read_b32 v16, v14 offset:512
    s_waitcnt lgkmcnt(0)
    """)
    gelu_tanh(a, 15, 17, 18, 19)
    round_bf16(a, 17, 18)
    a("v_mul_f32 v17, v17, v16")
    round_bf16(a, 17, 18)
    a(f"ds_write_b32 v14, v17 offset:{HS-GU}")
    a.label("Lffn_b2")
    DW, DACC, DUN = 32, 96, 8
    a(f"""
    s_waitcnt lgkmcnt(0)
    s_barrier
    s_lshl_b32 s17, s14, 6
    s_lshl_b32 s18, s16, 3
    s_add_u32 s17, s17, s18
    s_mul_i32 s17, s17, 1152
    v_lshlrev_b32 v6, 5, v1
    v_add_u32 v6, s17, v6
    s_lshl_b32 s18, s16, 5
    s_add_u32 s18, s18, {HS}
    v_mov_b32 v7, s18
    v_cmp_gt_u32 vcc, 36, v1
    s_and_saveexec_b64 s[24:25], vcc
    """)
    for r in range(8):
        a(f"global_load_dwordx4 v[{DW+8*r}:{DW+8*r+3}], v6, s[12:13]")
        a(f"global_load_dwordx4 v[{DW+8*r+4}:{DW+8*r+7}], v6, s[12:13] offset:16")
        a("v_add_u32 v6, 1152, v6")
    for i in range(32):
        a(f"v_mov_b32 v{DACC+i}, 0")
    for r in range(8):
        a(f"ds_read_b32 v24, v7 offset:{4*r}")
        a(f"ds_read_b32 v25, v7 offset:{256+4*r}")
        a(f"s_waitcnt vmcnt({2*(7-r)})")
        unpack8(a, DW + 8 * r, DUN)
        unpack8(a, DW + 8 * r + 4, DUN + 8)
        a("s_waitcnt lgkmcnt(0)")
        for b in range(2):
            for j in range(16):
                a(f"v_fmac_f32 v{DACC+16*b+j}, v{24+b}, v{DUN+j}")
    a("""
    v_lshlrev_b32 v6, 6, v1
    s_mul_i32 s18, s16, 4608
    v_add_u32 v6, s18, v6
    """)
    for b in range(2):
        for i in range(4):
            a(f"ds_write_b128 v6, v[{DACC+16*b+4*i}:{DACC+16*b+4*i+3}] offset:{2304*b+16*i}")
    a("""
    s_mov_b64 exec, s[24:25]
    s_waitcnt lgkmcnt(0)
    s_barrier
    v_lshlrev_b32 v6, 2, v0
    s_mul_i32 s18, s14, 4608
    v_add_u32 v7, s18, v6
    """)
    for part in range(3):
        if part == 2:
            a("""
            v_cmp_gt_u32 vcc, 128, v0
            s_and_saveexec_b64 s[24:25], vcc
            s_cbranch_execz La_end
            """)
        for w in range(8):
            a(f"ds_read_b32 v{32+w}, v6 offset:{2048*part+4608*w}")
        a("s_waitcnt lgkmcnt(0)")
        a("v_add_f32 v8, v32, v33")
        for w in range(2, 8):
            a(f"v_add_f32 v8, v8, v{32+w}")
        a(f"global_store_dword v7, v8, s[8:9] offset:{FFNP+2048*part}" if FFNP + 2048 * part < 4096 else
          f"v_add_u32 v9, {FFNP+2048*part}, v7")
        if FFNP + 2048 * part >= 4096:
            a("global_store_dword v9, v8, s[8:9]")
    a.label("La_end")
    a("s_endpgm")
    kd(a, name, 128)


def gen_oproj(a):
    name = "oproj_kernel"
    kstart(a, name)
    a(f"""
    s_cmp_ge_u32 s2, 288
    s_cbranch_scc1 Lo_end
    s_load_dwordx2 s[4:5], s[0:1], {KA['wo']}
    s_load_dwordx2 s[8:9], s[0:1], {KA['ws']}
    s_mov_b32 s10, 0x1c71c71d
    s_mul_hi_u32 s11, s2, s10
    s_mul_i32 s12, s11, 9
    s_sub_u32 s12, s2, s12
    v_and_b32 v1, 63, v0
    v_lshrrev_b32 v2, 6, v0
    v_lshrrev_b32 v3, 3, v1
    v_and_b32 v4, 7, v1
    v_lshl_add_u32 v5, v2, 5, v3
    s_lshl_b32 s13, s11, 7
    v_add_u32 v6, s13, v5
    v_mul_u32_u24 v6, 1152, v6
    v_lshl_add_u32 v6, v4, 4, v6
    s_lshl_b32 s14, s12, 7
    v_add_u32 v6, s14, v6
    s_mov_b32 s20, {f32hex(C_EXP)}
    s_waitcnt lgkmcnt(0)
    """)
    for i in range(4):
        a(f"global_load_dwordx4 v[{16+4*i}:{19+4*i}], v6, s[4:5]")
        a(f"v_add_u32 v6, {8*1152}, v6")
    a(f"""
    v_lshrrev_b32 v7, 7, v0
    v_and_b32 v8, 127, v0
    s_lshr_b32 s15, s11, 1
    s_and_b32 s16, s11, 1
    v_lshlrev_b32 v9, 4, v7
    v_add_u32 v9, s15, v9
    v_lshlrev_b32 v10, 7, v9
    s_lshl_b32 s17, s16, 3
    v_add_u32 v10, s17, v10
    v_lshlrev_b32 v11, 13, v9
    s_lshl_b32 s17, s16, 9
    v_add_u32 v11, s17, v11
    v_lshl_add_u32 v11, v8, 2, v11
    v_add_u32 v10, {AML}, v10
    v_add_u32 v11, {APART}, v11
    """)
    for s in range(8):
        a(f"global_load_dwordx2 v[{32+2*s}:{33+2*s}], v10, s[8:9] offset:{16*s}")
        a(f"global_load_dword v{48+s}, v11, s[8:9]")
        a("v_add_u32 v11, 1024, v11")
    a("s_waitcnt vmcnt(0)")
    a("v_max_f32 v12, v32, v34")
    for s in range(2, 8):
        a(f"v_max_f32 v12, v12, v{32+2*s}")
    a("v_mul_f32 v13, s20, v12")
    for s in range(8):
        a(f"v_fma_f32 v{32+2*s}, v{32+2*s}, s20, -v13")
    for s in range(8):
        a(f"v_exp_f32 v{32+2*s}, v{32+2*s}")
    a("v_mov_b32 v14, 0")
    a("v_mov_b32 v15, 0")
    for s in range(8):
        a(f"v_fmac_f32 v14, v{32+2*s}, v{33+2*s}")
        a(f"v_fmac_f32 v15, v{32+2*s}, v{48+s}")
    a("v_rcp_f32 v14, v14")
    a("v_mul_f32 v15, v15, v14")
    round_bf16(a, 15, 14)
    a("""
    v_lshlrev_b32 v14, 2, v0
    ds_write_b32 v14, v15
    s_waitcnt lgkmcnt(0)
    s_barrier
    v_lshlrev_b32 v14, 2, v5
    """)
    for i in range(16):
        a(f"v_mov_b32 v{56+i}, 0")
    for i in range(4):
        a(f"ds_read_b32 v{32+2*i}, v14 offset:{32*i}")
        a(f"ds_read_b32 v{33+2*i}, v14 offset:{512+32*i}")
    a("s_waitcnt lgkmcnt(0)")
    for i in range(4):
        unpack8(a, 16 + 4 * i, 40)
        for b in range(2):
            for j in range(8):
                a(f"v_fmac_f32 v{56+8*b+j}, v{32+2*i+b}, v{40+j}")
    a("v_lshlrev_b32 v14, 6, v0")
    for i in range(4):
        a(f"ds_write_b128 v14, v[{56+4*i}:{59+4*i}] offset:{1024+16*i}")
    a("""
    s_waitcnt lgkmcnt(0)
    s_barrier
    v_cmp_gt_u32 vcc, 128, v0
    s_and_saveexec_b64 s[18:19], vcc
    s_cbranch_execz Lo_end
    v_lshrrev_b32 v9, 6, v0
    v_and_b32 v10, 63, v0
    v_lshrrev_b32 v11, 3, v10
    v_and_b32 v12, 7, v10
    v_lshlrev_b32 v11, 6, v11
    v_lshl_add_u32 v12, v9, 3, v12
    v_lshl_add_u32 v11, v12, 2, v11
    v_mov_b32 v13, 0
    """)
    for n in range(32):
        a(f"ds_read_b32 v{20+n}, v11 offset:{1024+512*n}")
    a("s_waitcnt lgkmcnt(0)")
    for n in range(32):
        a(f"v_add_f32 v13, v13, v{20+n}")
    a(f"""
    s_lshl_b32 s17, s12, 5
    s_add_u32 s17, s17, s11
    s_lshl_b32 s17, s17, 9
    s_add_u32 s17, s17, {OPART}
    v_lshlrev_b32 v14, 2, v0
    v_add_u32 v14, s17, v14
    global_store_dword v14, v13, s[8:9]
    """)
    a.label("Lo_end")
    a("s_endpgm")
    kd(a, name, 72)


def gen_final(a):
    name = "final_kernel"
    kstart(a, name)
    a(f"""
    s_cmp_ge_u32 s2, 9
    s_cbranch_scc1 Lf_end
    s_load_dwordx2 s[4:5], s[0:1], {KA['x']}
    s_load_dwordx2 s[6:7], s[0:1], {KA['gw']}
    s_load_dwordx2 s[8:9], s[0:1], {KA['ws']}
    s_load_dwordx2 s[10:11], s[0:1], {KA['out']}
    v_and_b32 v1, 63, v0
    v_lshrrev_b32 v2, 6, v0
    v_mul_u32_u24 v3, 1152, v2
    v_lshl_add_u32 v3, v1, 1, v3
    v_lshlrev_b32 v4, 1, v1
    s_waitcnt lgkmcnt(0)
    """)
    for i in range(9):
        a(f"global_load_ushort v{16+i}, v3, s[4:5] offset:{128*i}")
        a(f"global_load_ushort v{32+i}, v4, s[6:7] offset:{128*i}")
    a(f"""
    s_lshl_b32 s12, s2, 14
    s_add_u32 s12, s12, {OPART}
    v_lshlrev_b32 v5, 8, v2
    v_lshl_add_u32 v5, v1, 2, v5
    v_add_u32 v5, s12, v5
    s_lshl_b32 s13, s2, 8
    s_add_u32 s13, s13, {FFNP}
    v_mul_u32_u24 v6, 2304, v2
    v_lshl_add_u32 v6, v1, 2, v6
    v_add_u32 v6, s13, v6
    v_mov_b32 v7, 0
    v_mov_b32 v8, 0
    """)
    for blk in range(2):
        for n in range(16):
            a(f"global_load_dword v{48+n}, v5, s[8:9] offset:{512*(n%8)}")
            if n == 7:
                a("v_add_u32 v5, 4096, v5")
        a("v_add_u32 v5, 4096, v5")
        a("s_waitcnt vmcnt(0)")
        for n in range(16):
            a(f"v_add_f32 v7, v7, v{48+n}")
    for blk in range(9):
        for n in range(8):
            a(f"global_load_dword v{48+n}, v6, s[8:9]")
            a("v_add_u32 v6, 4608, v6")
        a("s_waitcnt vmcnt(0)")
        for n in range(8):
            a(f"v_add_f32 v8, v8, v{48+n}")
    a("v_mov_b32 v9, 0")
    for i in range(9):
        a(f"v_lshlrev_b32 v{16+i}, 16, v{16+i}")
        a(f"v_lshlrev_b32 v{32+i}, 16, v{32+i}")
        a(f"v_mul_f32 v{16+i}, v{16+i}, v{32+i}")
        round_bf16(a, 16 + i, 10)
        a(f"v_add_f32 v9, v9, v{16+i}")
    a("""
    v_lshlrev_b32 v10, 2, v0
    ds_write_b32 v10, v9
    s_waitcnt lgkmcnt(0)
    s_barrier
    v_lshlrev_b32 v10, 8, v2
    v_mov_b32 v9, 0
    """)
    for half in range(2):
        for n in range(32):
            a(f"ds_read_b32 v{48+n}, v10 offset:{4*(32*half+n)}")
        a("s_waitcnt lgkmcnt(0)")
        for n in range(32):
            a(f"v_add_f32 v9, v9, v{48+n}")
    round_bf16(a, 9, 10)
    a(f"""
    s_mov_b32 s14, {f32hex(-math.log2(math.e))}
    v_mul_f32 v10, s14, v9
    v_exp_f32 v10, v10
    v_add_f32 v10, 1.0, v10
    v_rcp_f32 v10, v10
    """)
    round_bf16(a, 10, 11)
    round_bf16(a, 7, 11)
    round_bf16(a, 8, 11)
    a("v_mul_f32 v12, v10, v7")
    round_bf16(a, 12, 11)
    a("v_sub_f32 v13, 1.0, v10")
    round_bf16(a, 13, 11)
    a("v_mul_f32 v13, v13, v8")
    round_bf16(a, 13, 11)
    a("v_add_f32 v12, v12, v13")
    a("v_cvt_pk_bf16_f32 v12, v12, v12")
    a("""
    s_lshl_b32 s15, s2, 7
    v_mul_u32_u24 v14, 1152, v2
    v_lshl_add_u32 v14, v1, 1, v14
    v_add_u32 v14, s15, v14
    global_store_short v14, v12, s[10:11]
    """)
    a.label("Lf_end")
    a("s_endpgm")
    kd(a, name, 80)


HEADER = f"""; gated GQA decode attention + GEGLU FFN, mixed by a sigmoid gate.  Generated by dev/gen.py
; @launch kernel=qproj_kernel grid=(192,1,1) block=(256,1,1) lds=16384
; @launch kernel={NAME}_kernel grid=(328,1,1) block=(512,1,1) lds=67584
; @launch kernel=oproj_kernel grid=(288,1,1) block=(256,1,1) lds=17408
; @launch kernel=final_kernel grid=(9,1,1) block=(128,1,1) lds=1024
.amdgcn_target "amdgcn-amd-amdhsa--gfx950"
.text
"""


def main():
    a = Asm()
    a.raw(HEADER)
    gen_qproj(a)
    gen_attn(a)
    gen_oproj(a)
    gen_final(a)
    with open(OUT, "w") as f:
        f.write(a.text())
    print("wrote", OUT, len(a.text()), "bytes")


if __name__ == "__main__":
    main()
```

```python
import math
import os
import sys

sys.path.insert(0, os.path.dirname(os.path.abspath(__file__)))
from asmdsl import Asm, f32hex

NAME = "gated_mix__gqa_block_cached__glu_gated_geglu__decode"
OUT = os.path.join(os.path.dirname(os.path.abspath(__file__)), "..", "cdna_kernels", NAME + ".s")

QPART = 0x0
APART = 0x20000
AML = 0x60000
FFNP = 0x80000
OPART = 0x100000

C_EXP = math.log2(math.e) / math.sqrt(128.0)
KA = dict(x=0, k=8, v=16, wq=24, wo=32, bx=40, wg=48, wu=56, wd=64, gw=72, out=80, dbg=88, ws=96)


def kd(a, name, vgpr, sgpr=64):
    acc = (vgpr + 3) // 4 * 4
    a.raw(f""".section .rodata,"a"
.p2align 6
.amdhsa_kernel {name}
  .amdhsa_next_free_vgpr {vgpr}
  .amdhsa_next_free_sgpr {sgpr}
  .amdhsa_accum_offset {acc}
  .amdhsa_group_segment_fixed_size 0
  .amdhsa_kernarg_size 104
  .amdhsa_user_sgpr_count 2
  .amdhsa_user_sgpr_kernarg_segment_ptr 1
  .amdhsa_system_sgpr_workgroup_id_x 1
.end_amdhsa_kernel
.text""")


def kstart(a, name):
    a.raw(f""".globl {name}
.p2align 8
.type {name},@function
{name}:""")
    a.reset()


def unpack8(a, src, dst):
    for i in range(4):
        a(f"v_lshlrev_b32 v{dst+2*i}, 16, v{src+i}")
        a(f"v_and_b32 v{dst+2*i+1}, 0xffff0000, v{src+i}")


def round_bf16(a, reg, tmp):
    a(f"v_cvt_pk_bf16_f32 v{tmp}, v{reg}, v{reg}")
    a(f"v_and_b32 v{reg}, 0xffff0000, v{tmp}")


def gen_qproj(a):
    name = "qproj_kernel"
    kstart(a, name)
    a(f"""
    s_cmp_ge_u32 s2, 192
    s_cbranch_scc1 Lq_end
    s_load_dwordx2 s[4:5], s[0:1], {KA['x']}
    s_load_dwordx2 s[6:7], s[0:1], {KA['wq']}
    s_load_dwordx2 s[8:9], s[0:1], {KA['ws']}
    s_and_b32 s10, s2, 63
    s_lshr_b32 s11, s2, 6
    v_and_b32 v1, 63, v0
    v_lshrrev_b32 v2, 6, v0
    v_lshrrev_b32 v3, 3, v1
    v_and_b32 v4, 7, v1
    v_mul_u32_u24 v5, 48, v2
    v_add_u32 v5, v5, v3
    s_mul_i32 s12, s11, 192
    v_add_u32 v5, s12, v5
    v_lshlrev_b32 v6, 13, v5
    v_lshlrev_b32 v7, 4, v4
    v_add_u32 v6, v6, v7
    s_lshl_b32 s13, s10, 7
    v_add_u32 v6, s13, v6
    v_lshlrev_b32 v7, 1, v5
    s_waitcnt lgkmcnt(0)
    """)
    for i in range(6):
        a(f"global_load_dwordx4 v[{16+4*i}:{19+4*i}], v6, s[6:7]")
        a("v_add_u32 v6, 0x10000, v6")
        a(f"global_load_ushort v{40+2*i}, v7, s[4:5] offset:{16*i}")
        a(f"global_load_ushort v{41+2*i}, v7, s[4:5] offset:{1152+16*i}")
    for i in range(16):
        a(f"v_mov_b32 v{60+i}, 0")
    for i in range(6):
        a(f"s_waitcnt vmcnt({3*(5-i)})")
        a(f"v_lshlrev_b32 v{40+2*i}, 16, v{40+2*i}")
        a(f"v_lshlrev_b32 v{41+2*i}, 16, v{41+2*i}")
        unpack8(a, 16 + 4 * i, 52)
        for b in range(2):
            for j in range(8):
                a(f"v_fmac_f32 v{60+8*b+j}, v{40+2*i+b}, v{52+j}")
    a("v_lshlrev_b32 v8, 6, v0")
    for i in range(4):
        a(f"ds_write_b128 v8, v[{60+4*i}:{63+4*i}] offset:{16*i}")
    a("""
    s_waitcnt lgkmcnt(0)
    s_barrier
    v_cmp_gt_u32 vcc, 128, v0
    s_and_saveexec_b64 s[14:15], vcc
    s_cbranch_execz Lq_end
    v_lshrrev_b32 v9, 6, v0
    v_and_b32 v10, 63, v0
    v_lshrrev_b32 v11, 3, v10
    v_and_b32 v12, 7, v10
    v_lshlrev_b32 v11, 6, v11
    v_lshl_add_u32 v12, v9, 3, v12
    v_lshl_add_u32 v11, v12, 2, v11
    v_mov_b32 v13, 0
    """)
    for n in range(32):
        a(f"ds_read_b32 v{20+n}, v11 offset:{512*n}")
    a("s_waitcnt lgkmcnt(0)")
    for n in range(32):
        a(f"v_add_f32 v13, v13, v{20+n}")
    a("""
    s_lshl_b32 s16, s11, 1
    v_add_u32 v14, s16, v9
    v_lshlrev_b32 v14, 12, v14
    v_add_u32 v14, v14, v10
    s_lshl_b32 s17, s10, 6
    v_add_u32 v14, s17, v14
    v_lshlrev_b32 v14, 2, v14
    """)
    a(f"global_store_dword v14, v13, s[8:9] offset:{QPART}")
    a.label("Lq_end")
    a("s_endpgm")
    kd(a, name, 80)


CFG = dict(depth=2, nt="")
Q0, Q1 = 96, 100
SS = 104
VF = 112
O0, O1 = 8, 16
M0, M1, L0, L1 = 24, 25, 26, 27
T0, T1, CR0, CR1 = 28, 29, 30, 31
MC0, MC1 = 120, 121
NTILE = 32
QR = [list(range(8, 24)), list(range(104, 120)), list(range(24, 32)) + list(range(120, 128))]


def kbuf(par):
    return (32 + 32 * par) if par < 2 else 128 + 32 * (par - 2)


def attn_issue(a, par):
    kb = kbuf(par)
    vb = kb + 16
    nt = CFG["nt"]
    for j in range(4):
        a(f"global_load_dwordx4 v[{kb+4*j}:{kb+4*j+3}], v2, s[4:5] offset:{1024*j}{nt}")
    for j in range(4):
        a(f"global_load_dwordx4 v[{vb+4*j}:{vb+4*j+3}], v2, s[6:7] offset:{1024*j}{nt}")
    a("""
    s_add_u32 s4, s4, 4096
    s_addc_u32 s5, s5, 0
    s_add_u32 s6, s6, 4096
    s_addc_u32 s7, s7, 0
    """)


def attn_tile(a, par, waitk, waitv, issue):
    kb = kbuf(par)
    vb = kb + 16
    a(f"s_waitcnt vmcnt({waitk})")
    for j in range(4):
        for h in range(2):
            q = Q0 if h == 0 else Q1
            s = SS + 2 * j + h
            a(f"v_dot2_f32_bf16 v{s}, v{kb+4*j}, v{q}, 0")
            for i in range(1, 4):
                a(f"v_dot2_f32_bf16 v{s}, v{kb+4*j+i}, v{q+i}, v{s}")
    for stage in ("quad_perm:[1,0,3,2]", "quad_perm:[2,3,0,1]", "row_ror:4", "row_ror:8"):
        for n in range(8):
            a(f"v_add_f32_dpp v{SS+n}, v{SS+n}, v{SS+n} {stage} row_mask:0xf bank_mask:0xf")
    for h, (m, t, cr, mc, l, o) in enumerate(((M0, T0, CR0, MC0, L0, O0), (M1, T1, CR1, MC1, L1, O1))):
        a(f"v_max3_f32 v{t}, v{SS+h}, v{SS+2+h}, v{SS+4+h}")
        a(f"v_max3_f32 v{t}, v{t}, v{SS+6+h}, v{m}")
        a(f"v_sub_f32 v{cr}, v{m}, v{t}")
        a(f"v_mul_f32 v{cr}, s20, v{cr}")
        a(f"v_mul_f32 v{mc}, s20, v{t}")
        a(f"v_exp_f32 v{cr}, v{cr}")
        a(f"v_mov_b32 v{m}, v{t}")
        for j in range(4):
            a(f"v_fma_f32 v{SS+2*j+h}, v{SS+2*j+h}, s20, -v{mc}")
        for j in range(4):
            a(f"v_exp_f32 v{SS+2*j+h}, v{SS+2*j+h}")
        a(f"v_mul_f32 v{l}, v{l}, v{cr}")
        for i in range(8):
            a(f"v_mul_f32 v{o+i}, v{o+i}, v{cr}")
        a(f"v_add_f32 v{t}, v{SS+h}, v{SS+2+h}")
        a(f"v_add_f32 v{l}, v{l}, v{t}")
        a(f"v_add_f32 v{t}, v{SS+4+h}, v{SS+6+h}")
        a(f"v_add_f32 v{l}, v{l}, v{t}")
    a(f"s_waitcnt vmcnt({waitv})")
    for j in range(4):
        unpack8(a, vb + 4 * j, VF)
        for i in range(8):
            a(f"v_fmac_f32 v{O0+i}, v{SS+2*j}, v{VF+i}")
            a(f"v_fmac_f32 v{O1+i}, v{SS+2*j+1}, v{VF+i}")
    if issue:
        attn_issue(a, par)


def gelu_tanh(a, x, out, t1, t2):
    a(f"v_mul_f32 v{t1}, v{x}, v{x}")
    a(f"v_mul_f32 v{t1}, v{t1}, v{x}")
    a(f"v_fma_f32 v{t1}, v{t1}, s22, v{x}")
    a(f"v_mul_f32 v{t1}, s21, v{t1}")
    a(f"v_exp_f32 v{t1}, v{t1}")
    a(f"v_add_f32 v{t1}, 1.0, v{t1}")
    a(f"v_rcp_f32 v{t1}, v{t1}")
    a(f"v_fma_f32 v{t2}, v{t1}, -2.0, 1.0")
    a(f"v_add_f32 v{t2}, 1.0, v{t2}")
    a(f"v_mul_f32 v{t2}, 0.5, v{t2}")
    a(f"v_mul_f32 v{out}, v{x}, v{t2}")


def gen_attn(a):
    name = NAME + "_kernel"
    kstart(a, name)
    a(f"""
    s_cmp_ge_u32 s2, 328
    s_cbranch_scc1 La_end
    s_load_dwordx2 s[8:9], s[0:1], {KA['ws']}
    s_cmp_ge_u32 s2, 256
    s_cbranch_scc1 Lffn
    s_load_dwordx2 s[4:5], s[0:1], {KA['k']}
    s_load_dwordx2 s[6:7], s[0:1], {KA['v']}
    v_and_b32 v1, 63, v0
    v_lshlrev_b32 v2, 4, v1
    v_lshrrev_b32 v3, 6, v0
    v_readfirstlane_b32 s10, v3
    s_lshr_b32 s11, s2, 3
    s_and_b32 s12, s2, 7
    s_lshl_b32 s13, s11, 23
    s_lshl_b32 s14, s12, 20
    s_add_u32 s13, s13, s14
    s_lshl_b32 s14, s10, 17
    s_add_u32 s13, s13, s14
    s_mov_b32 s20, {f32hex(C_EXP)}
    s_lshr_b32 s15, s11, 4
    s_and_b32 s16, s11, 15
    s_lshl_b32 s15, s15, 14
    s_lshl_b32 s16, s16, 10
    s_add_u32 s15, s15, s16
    v_and_b32 v4, 15, v1
    v_lshlrev_b32 v4, 5, v4
    s_waitcnt lgkmcnt(0)
    s_add_u32 s4, s4, s13
    s_addc_u32 s5, s5, 0
    s_add_u32 s6, s6, s13
    s_addc_u32 s7, s7, 0
    s_add_u32 s18, s8, s15
    s_addc_u32 s19, s9, 0
    """)
    for ks in range(3):
        for h in range(2):
            for half in range(2):
                r = QR[ks][h * 8 + half * 4]
                a(f"global_load_dwordx4 v[{r}:{r+3}], v4, s[18:19] offset:{QPART + h*512 + half*16}")
        if ks < 2:
            a("v_add_u32 v4, 0x8000, v4")
    D = CFG["depth"]
    for p in range(D):
        attn_issue(a, p)
    a(f"s_waitcnt vmcnt({8*D})")
    for n in range(16):
        a(f"v_add_f32 v{QR[0][n]}, v{QR[0][n]}, v{QR[1][n]}")
    for n in range(16):
        a(f"v_add_f32 v{QR[0][n]}, v{QR[0][n]}, v{QR[2][n]}")
    for h in range(2):
        for i in range(4):
            q = Q0 if h == 0 else Q1
            a(f"v_cvt_pk_bf16_f32 v{q+i}, v{QR[0][h*8+2*i]}, v{QR[0][h*8+2*i+1]}")
    for i in range(8):
        a(f"v_mov_b32 v{O0+i}, 0")
        a(f"v_mov_b32 v{O1+i}, 0")
    a(f"""
    v_mov_b32 v{M0}, 0xff800000
    v_mov_b32 v{M1}, 0xff800000
    v_mov_b32 v{L0}, 0
    v_mov_b32 v{L1}, 0
    s_mov_b32 s23, 0
    """)
    nloop = (NTILE - D) // D
    rem = (NTILE - D) % D
    a.label("La_loop")
    for p in range(D):
        attn_tile(a, p, 8 * (D - 1) + 4, 8 * (D - 1), True)
    a(f"""
    s_add_u32 s23, s23, 1
    s_cmp_lt_u32 s23, {nloop}
    s_cbranch_scc1 La_loop
    """)
    for p in range(rem):
        attn_tile(a, p, 8 * (D - 1) + 4, 8 * (D - 1), True)
    for i in range(D):
        p = (rem + i) % D
        attn_tile(a, p, 8 * (D - 1 - i) + 4, 8 * (D - 1 - i), False)
    a("""
    v_lshrrev_b32 v4, 4, v0
    v_lshlrev_b32 v5, 9, v4
    v_and_b32 v6, 15, v0
    v_lshl_add_u32 v5, v6, 5, v5
    """)
    for i in range(2):
        a(f"ds_write_b128 v5, v[{O0+4*i}:{O0+4*i+3}] offset:{16*i}")
        a(f"ds_write_b128 v5, v[{O1+4*i}:{O1+4*i+3}] offset:{16384+16*i}")
    a(f"""
    v_lshlrev_b32 v6, 3, v4
    v_mov_b32 v{T0}, v{M0}
    v_mov_b32 v{T1}, v{L0}
    ds_write_b64 v6, v[{T0}:{T1}] offset:32768
    v_mov_b32 v{CR0}, v{M1}
    v_mov_b32 v{CR1}, v{L1}
    ds_write_b64 v6, v[{CR0}:{CR1}] offset:{32768+256}
    s_waitcnt lgkmcnt(0)
    s_barrier
    s_cmp_ge_u32 s10, 4
    s_cbranch_scc1 La_end
    v_lshrrev_b32 v4, 7, v0
    v_and_b32 v5, 127, v0
    v_lshlrev_b32 v6, 8, v4
    v_lshlrev_b32 v7, 14, v4
    v_lshl_add_u32 v7, v5, 2, v7
    """)
    for n in range(32):
        a(f"ds_read_b64 v[{32+2*n}:{33+2*n}], v6 offset:{32768+8*n}")
    a("s_waitcnt lgkmcnt(0)")
    a("v_max_f32 v8, v32, v34")
    for n in range(2, 32):
        a(f"v_max_f32 v8, v8, v{32+2*n}")
    a("v_mul_f32 v9, s20, v8")
    for n in range(32):
        a(f"v_fma_f32 v{32+2*n}, v{32+2*n}, s20, -v9")
    for n in range(32):
        a(f"v_exp_f32 v{32+2*n}, v{32+2*n}")
    for n in range(32):
        a(f"ds_read_b32 v{96+n}, v7 offset:{512*n}")
    a("v_mov_b32 v10, 0")
    a("v_mov_b32 v11, 0")
    for n in range(32):
        a(f"v_fmac_f32 v10, v{32+2*n}, v{33+2*n}")
    a("s_waitcnt lgkmcnt(0)")
    for n in range(32):
        a(f"v_fmac_f32 v11, v{32+2*n}, v{96+n}")
    a(f"""
    s_lshl_b32 s24, s2, 10
    s_add_u32 s24, s24, {APART}
    v_lshlrev_b32 v12, 2, v0
    v_add_u32 v12, s24, v12
    global_store_dword v12, v11, s[8:9]
    s_lshl_b32 s24, s2, 4
    s_add_u32 s24, s24, {AML}
    v_lshlrev_b32 v12, 3, v4
    v_add_u32 v12, s24, v12
    v_mov_b32 v14, v8
    v_mov_b32 v15, v10
    v_cmp_eq_u32 vcc, 0, v5
    s_and_saveexec_b64 s[26:27], vcc
    global_store_dwordx2 v12, v[14:15], s[8:9]
    s_mov_b64 exec, s[26:27]
    s_branch La_end
    """)
    W, X, ACC, UNP = 32, 68, 88, 120
    GU, HS = 65536, 66560
    a.label("Lffn")
    a(f"""
    s_load_dwordx2 s[4:5], s[0:1], {KA['x']}
    s_load_dwordx2 s[6:7], s[0:1], {KA['wg']}
    s_load_dwordx2 s[10:11], s[0:1], {KA['wu']}
    s_load_dwordx2 s[12:13], s[0:1], {KA['wd']}
    s_sub_u32 s14, s2, 256
    v_and_b32 v1, 63, v0
    v_lshrrev_b32 v2, 6, v0
    v_lshrrev_b32 v3, 3, v1
    v_and_b32 v4, 7, v1
    v_mul_u32_u24 v5, 72, v2
    v_add_u32 v5, v5, v3
    v_mul_u32_u24 v6, 9216, v5
    v_lshl_add_u32 v6, v4, 4, v6
    s_lshl_b32 s15, s14, 7
    v_add_u32 v6, s15, v6
    v_lshlrev_b32 v7, 1, v5
    s_mov_b32 s21, {f32hex(2.0*math.sqrt(2.0/math.pi)*math.log2(math.e))}
    s_mov_b32 s22, {f32hex(0.044715)}
    s_waitcnt lgkmcnt(0)
    """)
    for i in range(32):
        a(f"v_mov_b32 v{ACC+i}, 0")
    for mat, sb in ((0, "s[6:7]"), (1, "s[10:11]")):
        a("v_mov_b32 v8, v6")
        for i in range(9):
            a(f"global_load_dwordx4 v[{W+4*i}:{W+4*i+3}], v8, {sb}")
            a(f"v_add_u32 v8, {8*9216}, v8")
            if mat == 0:
                a(f"global_load_ushort v{X+2*i}, v7, s[4:5] offset:{16*i}")
                a(f"global_load_ushort v{X+2*i+1}, v7, s[4:5] offset:{1152+16*i}")
        for i in range(9):
            a(f"s_waitcnt vmcnt({(3 if mat == 0 else 1)*(8-i)})")
            if mat == 0:
                a(f"v_lshlrev_b32 v{X+2*i}, 16, v{X+2*i}")
                a(f"v_lshlrev_b32 v{X+2*i+1}, 16, v{X+2*i+1}")
            unpack8(a, W + 4 * i, UNP)
            for b in range(2):
                for j in range(8):
                    a(f"v_fmac_f32 v{ACC+16*mat+8*b+j}, v{X+2*i+b}, v{UNP+j}")
    a("v_lshlrev_b32 v8, 7, v0")
    for i in range(8):
        a(f"ds_write_b128 v8, v[{ACC+4*i}:{ACC+4*i+3}] offset:{16*i}")
    a("""
    s_waitcnt lgkmcnt(0)
    s_barrier
    s_cmp_ge_u32 s10, 4
    """)
    a.lines.pop()
    a("""
    v_readfirstlane_b32 s16, v2
    s_cmp_ge_u32 s16, 4
    s_cbranch_scc1 Lffn_b1
    v_lshrrev_b32 v9, 6, v0
    v_and_b32 v10, 63, v0
    v_lshrrev_b32 v11, 3, v10
    v_and_b32 v12, 7, v10
    v_lshlrev_b32 v11, 7, v11
    v_lshl_add_u32 v11, v9, 5, v11
    v_lshl_add_u32 v11, v12, 2, v11
    v_mov_b32 v13, 0
    """)
    for half in range(2):
        for n in range(32):
            a(f"ds_read_b32 v{32+n}, v11 offset:{1024*(32*half+n)}")
        a("s_waitcnt lgkmcnt(0)")
        for n in range(32):
            a(f"v_add_f32 v13, v13, v{32+n}")
    round_bf16(a, 13, 14)
    a(f"""
    v_lshlrev_b32 v14, 2, v0
    v_add_u32 v14, {GU}, v14
    ds_write_b32 v14, v13
    """)
    a.label("Lffn_b1")
    a(f"""
    s_waitcnt lgkmcnt(0)
    s_barrier
    s_cmp_ge_u32 s16, 2
    s_cbranch_scc1 Lffn_b2
    v_lshlrev_b32 v14, 2, v0
    v_add_u32 v14, {GU}, v14
    ds_read_b32 v15, v14
    ds_read_b32 v16, v14 offset:512
    s_waitcnt lgkmcnt(0)
    """)
    gelu_tanh(a, 15, 17, 18, 19)
    round_bf16(a, 17, 18)
    a("v_mul_f32 v17, v17, v16")
    round_bf16(a, 17, 18)
    a(f"ds_write_b32 v14, v17 offset:{HS-GU}")
    a.label("Lffn_b2")
    DW, DACC, DUN = 32, 96, 8
    a(f"""
    s_waitcnt lgkmcnt(0)
    s_barrier
    s_lshl_b32 s17, s14, 6
    s_lshl_b32 s18, s16, 3
    s_add_u32 s17, s17, s18
    s_mul_i32 s17, s17, 1152
    v_lshlrev_b32 v6, 5, v1
    v_add_u32 v6, s17, v6
    s_lshl_b32 s18, s16, 5
    s_add_u32 s18, s18, {HS}
    v_mov_b32 v7, s18
    v_cmp_gt_u32 vcc, 36, v1
    s_and_saveexec_b64 s[24:25], vcc
    """)
    for r in range(8):
        a(f"global_load_dwordx4 v[{DW+8*r}:{DW+8*r+3}], v6, s[12:13]")
        a(f"global_load_dwordx4 v[{DW+8*r+4}:{DW+8*r+7}], v6, s[12:13] offset:16")
        a("v_add_u32 v6, 1152, v6")
    for i in range(32):
        a(f"v_mov_b32 v{DACC+i}, 0")
    for r in range(8):
        a(f"ds_read_b32 v24, v7 offset:{4*r}")
        a(f"ds_read_b32 v25, v7 offset:{256+4*r}")
        a(f"s_waitcnt vmcnt({2*(7-r)})")
        unpack8(a, DW + 8 * r, DUN)
        unpack8(a, DW + 8 * r + 4, DUN + 8)
        a("s_waitcnt lgkmcnt(0)")
        for b in range(2):
            for j in range(16):
                a(f"v_fmac_f32 v{DACC+16*b+j}, v{24+b}, v{DUN+j}")
    a("""
    v_lshlrev_b32 v6, 6, v1
    s_mul_i32 s18, s16, 4608
    v_add_u32 v6, s18, v6
    """)
    for b in range(2):
        for i in range(4):
            a(f"ds_write_b128 v6, v[{DACC+16*b+4*i}:{DACC+16*b+4*i+3}] offset:{2304*b+16*i}")
    a("""
    s_mov_b64 exec, s[24:25]
    s_waitcnt lgkmcnt(0)
    s_barrier
    v_lshlrev_b32 v6, 2, v0
    s_mul_i32 s18, s14, 4608
    v_add_u32 v7, s18, v6
    """)
    for part in range(3):
        if part == 2:
            a("""
            v_cmp_gt_u32 vcc, 128, v0
            s_and_saveexec_b64 s[24:25], vcc
            s_cbranch_execz La_end
            """)
        for w in range(8):
            a(f"ds_read_b32 v{32+w}, v6 offset:{2048*part+4608*w}")
        a("s_waitcnt lgkmcnt(0)")
        a("v_add_f32 v8, v32, v33")
        for w in range(2, 8):
            a(f"v_add_f32 v8, v8, v{32+w}")
        a(f"global_store_dword v7, v8, s[8:9] offset:{FFNP+2048*part}" if FFNP + 2048 * part < 4096 else
          f"v_add_u32 v9, {FFNP+2048*part}, v7")
        if FFNP + 2048 * part >= 4096:
            a("global_store_dword v9, v8, s[8:9]")
    a.label("La_end")
    a("s_endpgm")
    kd(a, name, 128 + 32 * max(0, CFG["depth"] - 2))


def gen_oproj(a):
    name = "oproj_kernel"
    kstart(a, name)
    a(f"""
    s_cmp_ge_u32 s2, 288
    s_cbranch_scc1 Lo_end
    s_load_dwordx2 s[4:5], s[0:1], {KA['wo']}
    s_load_dwordx2 s[8:9], s[0:1], {KA['ws']}
    s_mov_b32 s10, 0x1c71c71d
    s_mul_hi_u32 s11, s2, s10
    s_mul_i32 s12, s11, 9
    s_sub_u32 s12, s2, s12
    v_and_b32 v1, 63, v0
    v_lshrrev_b32 v2, 6, v0
    v_lshrrev_b32 v3, 3, v1
    v_and_b32 v4, 7, v1
    v_lshl_add_u32 v5, v2, 5, v3
    s_lshl_b32 s13, s11, 7
    v_add_u32 v6, s13, v5
    v_mul_u32_u24 v6, 1152, v6
    v_lshl_add_u32 v6, v4, 4, v6
    s_lshl_b32 s14, s12, 7
    v_add_u32 v6, s14, v6
    s_mov_b32 s20, {f32hex(C_EXP)}
    s_waitcnt lgkmcnt(0)
    """)
    for i in range(4):
        a(f"global_load_dwordx4 v[{16+4*i}:{19+4*i}], v6, s[4:5]")
        a(f"v_add_u32 v6, {8*1152}, v6")
    a(f"""
    v_lshrrev_b32 v7, 7, v0
    v_and_b32 v8, 127, v0
    s_lshr_b32 s15, s11, 1
    s_and_b32 s16, s11, 1
    v_lshlrev_b32 v9, 4, v7
    v_add_u32 v9, s15, v9
    v_lshlrev_b32 v10, 7, v9
    s_lshl_b32 s17, s16, 3
    v_add_u32 v10, s17, v10
    v_lshlrev_b32 v11, 13, v9
    s_lshl_b32 s17, s16, 9
    v_add_u32 v11, s17, v11
    v_lshl_add_u32 v11, v8, 2, v11
    v_add_u32 v10, {AML}, v10
    v_add_u32 v11, {APART}, v11
    """)
    for s in range(8):
        a(f"global_load_dwordx2 v[{32+2*s}:{33+2*s}], v10, s[8:9] offset:{16*s}")
        a(f"global_load_dword v{48+s}, v11, s[8:9]")
        a("v_add_u32 v11, 1024, v11")
    a("s_waitcnt vmcnt(0)")
    a("v_max_f32 v12, v32, v34")
    for s in range(2, 8):
        a(f"v_max_f32 v12, v12, v{32+2*s}")
    a("v_mul_f32 v13, s20, v12")
    for s in range(8):
        a(f"v_fma_f32 v{32+2*s}, v{32+2*s}, s20, -v13")
    for s in range(8):
        a(f"v_exp_f32 v{32+2*s}, v{32+2*s}")
    a("v_mov_b32 v14, 0")
    a("v_mov_b32 v15, 0")
    for s in range(8):
        a(f"v_fmac_f32 v14, v{32+2*s}, v{33+2*s}")
        a(f"v_fmac_f32 v15, v{32+2*s}, v{48+s}")
    a("v_rcp_f32 v14, v14")
    a("v_mul_f32 v15, v15, v14")
    round_bf16(a, 15, 14)
    a("""
    v_lshlrev_b32 v14, 2, v0
    ds_write_b32 v14, v15
    s_waitcnt lgkmcnt(0)
    s_barrier
    v_lshlrev_b32 v14, 2, v5
    """)
    for i in range(16):
        a(f"v_mov_b32 v{56+i}, 0")
    for i in range(4):
        a(f"ds_read_b32 v{32+2*i}, v14 offset:{32*i}")
        a(f"ds_read_b32 v{33+2*i}, v14 offset:{512+32*i}")
    a("s_waitcnt lgkmcnt(0)")
    for i in range(4):
        unpack8(a, 16 + 4 * i, 40)
        for b in range(2):
            for j in range(8):
                a(f"v_fmac_f32 v{56+8*b+j}, v{32+2*i+b}, v{40+j}")
    a("v_lshlrev_b32 v14, 6, v0")
    for i in range(4):
        a(f"ds_write_b128 v14, v[{56+4*i}:{59+4*i}] offset:{1024+16*i}")
    a("""
    s_waitcnt lgkmcnt(0)
    s_barrier
    v_cmp_gt_u32 vcc, 128, v0
    s_and_saveexec_b64 s[18:19], vcc
    s_cbranch_execz Lo_end
    v_lshrrev_b32 v9, 6, v0
    v_and_b32 v10, 63, v0
    v_lshrrev_b32 v11, 3, v10
    v_and_b32 v12, 7, v10
    v_lshlrev_b32 v11, 6, v11
    v_lshl_add_u32 v12, v9, 3, v12
    v_lshl_add_u32 v11, v12, 2, v11
    v_mov_b32 v13, 0
    """)
    for n in range(32):
        a(f"ds_read_b32 v{20+n}, v11 offset:{1024+512*n}")
    a("s_waitcnt lgkmcnt(0)")
    for n in range(32):
        a(f"v_add_f32 v13, v13, v{20+n}")
    a(f"""
    s_lshl_b32 s17, s12, 5
    s_add_u32 s17, s17, s11
    s_lshl_b32 s17, s17, 9
    s_add_u32 s17, s17, {OPART}
    v_lshlrev_b32 v14, 2, v0
    v_add_u32 v14, s17, v14
    global_store_dword v14, v13, s[8:9]
    """)
    a.label("Lo_end")
    a("s_endpgm")
    kd(a, name, 72)


def gen_final(a):
    name = "final_kernel"
    kstart(a, name)
    a(f"""
    s_cmp_ge_u32 s2, 9
    s_cbranch_scc1 Lf_end
    s_load_dwordx2 s[4:5], s[0:1], {KA['x']}
    s_load_dwordx2 s[6:7], s[0:1], {KA['gw']}
    s_load_dwordx2 s[8:9], s[0:1], {KA['ws']}
    s_load_dwordx2 s[10:11], s[0:1], {KA['out']}
    v_and_b32 v1, 63, v0
    v_lshrrev_b32 v2, 6, v0
    v_mul_u32_u24 v3, 1152, v2
    v_lshl_add_u32 v3, v1, 1, v3
    v_lshlrev_b32 v4, 1, v1
    s_waitcnt lgkmcnt(0)
    """)
    for i in range(9):
        a(f"global_load_ushort v{16+i}, v3, s[4:5] offset:{128*i}")
        a(f"global_load_ushort v{32+i}, v4, s[6:7] offset:{128*i}")
    a(f"""
    s_lshl_b32 s12, s2, 14
    s_add_u32 s12, s12, {OPART}
    v_lshlrev_b32 v5, 8, v2
    v_lshl_add_u32 v5, v1, 2, v5
    v_add_u32 v5, s12, v5
    s_lshl_b32 s13, s2, 8
    s_add_u32 s13, s13, {FFNP}
    v_mul_u32_u24 v6, 2304, v2
    v_lshl_add_u32 v6, v1, 2, v6
    v_add_u32 v6, s13, v6
    v_mov_b32 v7, 0
    v_mov_b32 v8, 0
    """)
    for blk in range(2):
        for n in range(16):
            a(f"global_load_dword v{48+n}, v5, s[8:9] offset:{512*(n%8)}")
            if n == 7:
                a("v_add_u32 v5, 4096, v5")
        a("v_add_u32 v5, 4096, v5")
        a("s_waitcnt vmcnt(0)")
        for n in range(16):
            a(f"v_add_f32 v7, v7, v{48+n}")
    for blk in range(9):
        for n in range(8):
            a(f"global_load_dword v{48+n}, v6, s[8:9]")
            a("v_add_u32 v6, 4608, v6")
        a("s_waitcnt vmcnt(0)")
        for n in range(8):
            a(f"v_add_f32 v8, v8, v{48+n}")
    a("v_mov_b32 v9, 0")
    for i in range(9):
        a(f"v_lshlrev_b32 v{16+i}, 16, v{16+i}")
        a(f"v_lshlrev_b32 v{32+i}, 16, v{32+i}")
        a(f"v_mul_f32 v{16+i}, v{16+i}, v{32+i}")
        round_bf16(a, 16 + i, 10)
        a(f"v_add_f32 v9, v9, v{16+i}")
    a("""
    v_lshlrev_b32 v10, 2, v0
    ds_write_b32 v10, v9
    s_waitcnt lgkmcnt(0)
    s_barrier
    v_lshlrev_b32 v10, 8, v2
    v_mov_b32 v9, 0
    """)
    for half in range(2):
        for n in range(32):
            a(f"ds_read_b32 v{48+n}, v10 offset:{4*(32*half+n)}")
        a("s_waitcnt lgkmcnt(0)")
        for n in range(32):
            a(f"v_add_f32 v9, v9, v{48+n}")
    round_bf16(a, 9, 10)
    a(f"""
    s_mov_b32 s14, {f32hex(-math.log2(math.e))}
    v_mul_f32 v10, s14, v9
    v_exp_f32 v10, v10
    v_add_f32 v10, 1.0, v10
    v_rcp_f32 v10, v10
    """)
    round_bf16(a, 10, 11)
    round_bf16(a, 7, 11)
    round_bf16(a, 8, 11)
    a("v_mul_f32 v12, v10, v7")
    round_bf16(a, 12, 11)
    a("v_sub_f32 v13, 1.0, v10")
    round_bf16(a, 13, 11)
    a("v_mul_f32 v13, v13, v8")
    round_bf16(a, 13, 11)
    a("v_add_f32 v12, v12, v13")
    a("v_cvt_pk_bf16_f32 v12, v12, v12")
    a("""
    s_lshl_b32 s15, s2, 7
    v_mul_u32_u24 v14, 1152, v2
    v_lshl_add_u32 v14, v1, 1, v14
    v_add_u32 v14, s15, v14
    global_store_short v14, v12, s[10:11]
    """)
    a.label("Lf_end")
    a("s_endpgm")
    kd(a, name, 80)


HEADER = f"""; gated GQA decode attention + GEGLU FFN, mixed by a sigmoid gate.  Generated by dev/gen.py
; Kernarg: x,k,v,wq,wo,Bx,wg,wu,wd,gate_w,out,dbg,ws (8 bytes each)
; @launch kernel=qproj_kernel grid=(192,1,1) block=(256,1,1) lds=16384
; @launch kernel={NAME}_kernel grid=(328,1,1) block=(512,1,1) lds=67584
; @launch kernel=oproj_kernel grid=(288,1,1) block=(256,1,1) lds=17408
; @launch kernel=final_kernel grid=(9,1,1) block=(128,1,1) lds=1024
.amdgcn_target "amdgcn-amd-amdhsa--gfx950"
.text
"""


def main():
    out = OUT
    for arg in sys.argv[1:]:
        k, v = arg.split("=")
        if k == "out":
            out = v
        elif k == "nt":
            CFG["nt"] = " nt" if v == "1" else ""
        else:
            CFG[k] = int(v)
    a = Asm()
    a.raw(HEADER)
    gen_qproj(a)
    gen_attn(a)
    gen_oproj(a)
    gen_final(a)
    with open(out, "w") as f:
        f.write(a.text())
    print("wrote", out, len(a.text()), "bytes")


if __name__ == "__main__":
    main()
```

```python
import math
import os
import sys

sys.path.insert(0, os.path.dirname(os.path.abspath(__file__)))
from asmdsl import Asm, f32hex

NAME = "gated_mix__gqa_block_cached__glu_gated_geglu__decode"
OUT = os.path.join(os.path.dirname(os.path.abspath(__file__)), "..", "cdna_kernels", NAME + ".s")

QPART = 0x0
APART = 0x20000
AML = 0x60000
FFNP = 0x80000
OPART = 0x100000

C_EXP = math.log2(math.e) / math.sqrt(128.0)
KA = dict(x=0, k=8, v=16, wq=24, wo=32, bx=40, wg=48, wu=56, wd=64, gw=72, out=80, dbg=88, ws=96)


def kd(a, name, vgpr, sgpr=64):
    acc = (vgpr + 3) // 4 * 4
    a.raw(f""".section .rodata,"a"
.p2align 6
.amdhsa_kernel {name}
  .amdhsa_next_free_vgpr {vgpr}
  .amdhsa_next_free_sgpr {sgpr}
  .amdhsa_accum_offset {acc}
  .amdhsa_group_segment_fixed_size 0
  .amdhsa_kernarg_size 104
  .amdhsa_user_sgpr_count 2
  .amdhsa_user_sgpr_kernarg_segment_ptr 1
  .amdhsa_system_sgpr_workgroup_id_x 1
.end_amdhsa_kernel
.text""")


def kstart(a, name):
    a.raw(f""".globl {name}
.p2align 8
.type {name},@function
{name}:""")
    a.reset()


def unpack8(a, src, dst):
    for i in range(4):
        a(f"v_lshlrev_b32 v{dst+2*i}, 16, v{src+i}")
        a(f"v_and_b32 v{dst+2*i+1}, 0xffff0000, v{src+i}")


def round_bf16(a, reg, tmp):
    a(f"v_cvt_pk_bf16_f32 v{tmp}, v{reg}, v{reg}")
    a(f"v_and_b32 v{reg}, 0xffff0000, v{tmp}")


def gen_qproj(a):
    name = "qproj_kernel"
    kstart(a, name)
    a(f"""
    s_cmp_ge_u32 s2, 192
    s_cbranch_scc1 Lq_end
    s_load_dwordx2 s[4:5], s[0:1], {KA['x']}
    s_load_dwordx2 s[6:7], s[0:1], {KA['wq']}
    s_load_dwordx2 s[8:9], s[0:1], {KA['ws']}
    s_and_b32 s10, s2, 63
    s_lshr_b32 s11, s2, 6
    v_and_b32 v1, 63, v0
    v_lshrrev_b32 v2, 6, v0
    v_lshrrev_b32 v3, 3, v1
    v_and_b32 v4, 7, v1
    v_mul_u32_u24 v5, 48, v2
    v_add_u32 v5, v5, v3
    s_mul_i32 s12, s11, 192
    v_add_u32 v5, s12, v5
    v_lshlrev_b32 v6, 13, v5
    v_lshlrev_b32 v7, 4, v4
    v_add_u32 v6, v6, v7
    s_lshl_b32 s13, s10, 7
    v_add_u32 v6, s13, v6
    v_lshlrev_b32 v7, 1, v5
    s_waitcnt lgkmcnt(0)
    """)
    for i in range(6):
        a(f"global_load_dwordx4 v[{16+4*i}:{19+4*i}], v6, s[6:7]")
        a("v_add_u32 v6, 0x10000, v6")
        a(f"global_load_ushort v{40+2*i}, v7, s[4:5] offset:{16*i}")
        a(f"global_load_ushort v{41+2*i}, v7, s[4:5] offset:{1152+16*i}")
    for i in range(16):
        a(f"v_mov_b32 v{60+i}, 0")
    for i in range(6):
        a(f"s_waitcnt vmcnt({3*(5-i)})")
        a(f"v_lshlrev_b32 v{40+2*i}, 16, v{40+2*i}")
        a(f"v_lshlrev_b32 v{41+2*i}, 16, v{41+2*i}")
        unpack8(a, 16 + 4 * i, 52)
        for b in range(2):
            for j in range(8):
                a(f"v_fmac_f32 v{60+8*b+j}, v{40+2*i+b}, v{52+j}")
    a("v_lshlrev_b32 v8, 6, v0")
    for i in range(4):
        a(f"ds_write_b128 v8, v[{60+4*i}:{63+4*i}] offset:{16*i}")
    a("""
    s_waitcnt lgkmcnt(0)
    s_barrier
    v_cmp_gt_u32 vcc, 128, v0
    s_and_saveexec_b64 s[14:15], vcc
    s_cbranch_execz Lq_end
    v_lshrrev_b32 v9, 6, v0
    v_and_b32 v10, 63, v0
    v_lshrrev_b32 v11, 3, v10
    v_and_b32 v12, 7, v10
    v_lshlrev_b32 v11, 6, v11
    v_lshl_add_u32 v12, v9, 3, v12
    v_lshl_add_u32 v11, v12, 2, v11
    v_mov_b32 v13, 0
    """)
    for n in range(32):
        a(f"ds_read_b32 v{20+n}, v11 offset:{512*n}")
    a("s_waitcnt lgkmcnt(0)")
    for n in range(32):
        a(f"v_add_f32 v13, v13, v{20+n}")
    a("""
    s_lshl_b32 s16, s11, 1
    v_add_u32 v14, s16, v9
    v_lshlrev_b32 v14, 12, v14
    v_add_u32 v14, v14, v10
    s_lshl_b32 s17, s10, 6
    v_add_u32 v14, s17, v14
    v_lshlrev_b32 v14, 2, v14
    """)
    a(f"global_store_dword v14, v13, s[8:9] offset:{QPART}")
    a.label("Lq_end")
    a("s_endpgm")
    kd(a, name, 80)


CFG = dict(depth=2, nt=" nt", mode=2)
Q0, Q1 = 96, 100
SS = 104
VF = 112
O0, O1 = 8, 16
M0, M1, L0, L1 = 24, 25, 26, 27
T0, T1, CR0, CR1 = 28, 29, 30, 31
MC0, MC1 = 120, 121
NTILE = 32
QR = [list(range(8, 24)), list(range(104, 120)), list(range(24, 32)) + list(range(120, 128))]


def kbuf(par):
    return (32 + 32 * par) if par < 2 else 128 + 32 * (par - 2)


def attn_issue(a, par):
    kb = kbuf(par)
    vb = kb + 16
    nt = CFG["nt"]
    for j in range(4):
        a(f"global_load_dwordx4 v[{kb+4*j}:{kb+4*j+3}], v2, s[4:5] offset:{1024*j}{nt}")
    for j in range(4):
        a(f"global_load_dwordx4 v[{vb+4*j}:{vb+4*j+3}], v2, s[6:7] offset:{1024*j}{nt}")
    mode = CFG.get("mode", 0)
    if mode == 1:
        a("""
        s_add_u32 s32, s32, 1
        s_and_b32 s33, s32, 31
        s_lshl_b32 s33, s33, 12
        s_add_u32 s4, s28, s33
        s_addc_u32 s5, s29, 0
        s_add_u32 s6, s30, s33
        s_addc_u32 s7, s31, 0
        """)
    else:
        step = 32768 if mode == 2 else 4096
        a(f"""
        s_add_u32 s4, s4, {step}
        s_addc_u32 s5, s5, 0
        s_add_u32 s6, s6, {step}
        s_addc_u32 s7, s7, 0
        """)


def attn_tile(a, par, waitk, waitv, issue):
    kb = kbuf(par)
    vb = kb + 16
    if CFG.get("strip"):
        a(f"s_waitcnt vmcnt({waitv})")
        for j in range(4):
            a(f"v_or_b32 v{O0+j}, v{O0+j}, v{kb+4*j}")
            a(f"v_or_b32 v{O1+j}, v{O1+j}, v{vb+4*j}")
        if issue:
            attn_issue(a, par)
        return
    a(f"s_waitcnt vmcnt({waitk})")
    for j in range(4):
        for h in range(2):
            q = Q0 if h == 0 else Q1
            s = SS + 2 * j + h
            a(f"v_dot2_f32_bf16 v{s}, v{kb+4*j}, v{q}, 0")
            for i in range(1, 4):
                a(f"v_dot2_f32_bf16 v{s}, v{kb+4*j+i}, v{q+i}, v{s}")
    for stage in ("quad_perm:[1,0,3,2]", "quad_perm:[2,3,0,1]", "row_ror:4", "row_ror:8"):
        for n in range(8):
            a(f"v_add_f32_dpp v{SS+n}, v{SS+n}, v{SS+n} {stage} row_mask:0xf bank_mask:0xf")
    for h, (m, t, cr, mc, l, o) in enumerate(((M0, T0, CR0, MC0, L0, O0), (M1, T1, CR1, MC1, L1, O1))):
        a(f"v_max3_f32 v{t}, v{SS+h}, v{SS+2+h}, v{SS+4+h}")
        a(f"v_max3_f32 v{t}, v{t}, v{SS+6+h}, v{m}")
        a(f"v_sub_f32 v{cr}, v{m}, v{t}")
        a(f"v_mul_f32 v{cr}, s20, v{cr}")
        a(f"v_mul_f32 v{mc}, s20, v{t}")
        a(f"v_exp_f32 v{cr}, v{cr}")
        a(f"v_mov_b32 v{m}, v{t}")
        for j in range(4):
            a(f"v_fma_f32 v{SS+2*j+h}, v{SS+2*j+h}, s20, -v{mc}")
        for j in range(4):
            a(f"v_exp_f32 v{SS+2*j+h}, v{SS+2*j+h}")
        a(f"v_mul_f32 v{l}, v{l}, v{cr}")
        for i in range(8):
            a(f"v_mul_f32 v{o+i}, v{o+i}, v{cr}")
        a(f"v_add_f32 v{t}, v{SS+h}, v{SS+2+h}")
        a(f"v_add_f32 v{l}, v{l}, v{t}")
        a(f"v_add_f32 v{t}, v{SS+4+h}, v{SS+6+h}")
        a(f"v_add_f32 v{l}, v{l}, v{t}")
    a(f"s_waitcnt vmcnt({waitv})")
    for j in range(4):
        unpack8(a, vb + 4 * j, VF)
        for i in range(8):
            a(f"v_fmac_f32 v{O0+i}, v{SS+2*j}, v{VF+i}")
            a(f"v_fmac_f32 v{O1+i}, v{SS+2*j+1}, v{VF+i}")
    if issue:
        attn_issue(a, par)


def gelu_tanh(a, x, out, t1, t2):
    a(f"v_mul_f32 v{t1}, v{x}, v{x}")
    a(f"v_mul_f32 v{t1}, v{t1}, v{x}")
    a(f"v_fma_f32 v{t1}, v{t1}, s22, v{x}")
    a(f"v_mul_f32 v{t1}, s21, v{t1}")
    a(f"v_exp_f32 v{t1}, v{t1}")
    a(f"v_add_f32 v{t1}, 1.0, v{t1}")
    a(f"v_rcp_f32 v{t1}, v{t1}")
    a(f"v_fma_f32 v{t2}, v{t1}, -2.0, 1.0")
    a(f"v_add_f32 v{t2}, 1.0, v{t2}")
    a(f"v_mul_f32 v{t2}, 0.5, v{t2}")
    a(f"v_mul_f32 v{out}, v{x}, v{t2}")


def gen_attn(a):
    name = NAME + "_kernel"
    kstart(a, name)
    a(f"""
    s_cmp_ge_u32 s2, 328
    s_cbranch_scc1 La_end
    s_load_dwordx2 s[8:9], s[0:1], {KA['ws']}
    s_cmp_ge_u32 s2, 256
    s_cbranch_scc1 Lffn
    s_load_dwordx2 s[4:5], s[0:1], {KA['k']}
    s_load_dwordx2 s[6:7], s[0:1], {KA['v']}
    v_and_b32 v1, 63, v0
    v_lshlrev_b32 v2, 4, v1
    v_lshrrev_b32 v3, 6, v0
    v_readfirstlane_b32 s10, v3
    s_lshr_b32 s11, s2, 3
    s_and_b32 s12, s2, 7
    s_lshl_b32 s13, s11, 23
    s_lshl_b32 s14, s12, 20
    s_add_u32 s13, s13, s14
    s_lshl_b32 s14, s10, {12 if CFG.get("mode",0)==2 else 17}
    s_add_u32 s13, s13, s14
    s_mov_b32 s20, {f32hex(C_EXP)}
    s_lshr_b32 s15, s11, 4
    s_and_b32 s16, s11, 15
    s_lshl_b32 s15, s15, 14
    s_lshl_b32 s16, s16, 10
    s_add_u32 s15, s15, s16
    v_and_b32 v4, 15, v1
    v_lshlrev_b32 v4, 5, v4
    s_waitcnt lgkmcnt(0)
    s_add_u32 s4, s4, s13
    s_addc_u32 s5, s5, 0
    s_add_u32 s6, s6, s13
    s_addc_u32 s7, s7, 0
    s_add_u32 s18, s8, s15
    s_addc_u32 s19, s9, 0
    """)
    if CFG.get("mode", 0) == 1:
        a("""
        s_mov_b32 s28, s4
        s_mov_b32 s29, s5
        s_mov_b32 s30, s6
        s_mov_b32 s31, s7
        s_lshl_b32 s32, s10, 2
        s_mul_i32 s33, s2, 5
        s_add_u32 s32, s32, s33
        s_and_b32 s33, s32, 31
        s_lshl_b32 s33, s33, 12
        s_add_u32 s4, s28, s33
        s_addc_u32 s5, s29, 0
        s_add_u32 s6, s30, s33
        s_addc_u32 s7, s31, 0
        """)
    for ks in range(3):
        for h in range(2):
            for half in range(2):
                r = QR[ks][h * 8 + half * 4]
                a(f"global_load_dwordx4 v[{r}:{r+3}], v4, s[18:19] offset:{QPART + h*512 + half*16}")
        if ks < 2:
            a("v_add_u32 v4, 0x8000, v4")
    D = CFG["depth"]
    for p in range(D):
        attn_issue(a, p)
    a(f"s_waitcnt vmcnt({8*D})")
    for n in range(16):
        a(f"v_add_f32 v{QR[0][n]}, v{QR[0][n]}, v{QR[1][n]}")
    for n in range(16):
        a(f"v_add_f32 v{QR[0][n]}, v{QR[0][n]}, v{QR[2][n]}")
    for h in range(2):
        for i in range(4):
            q = Q0 if h == 0 else Q1
            a(f"v_cvt_pk_bf16_f32 v{q+i}, v{QR[0][h*8+2*i]}, v{QR[0][h*8+2*i+1]}")
    for i in range(8):
        a(f"v_mov_b32 v{O0+i}, 0")
        a(f"v_mov_b32 v{O1+i}, 0")
    a(f"""
    v_mov_b32 v{M0}, 0xff800000
    v_mov_b32 v{M1}, 0xff800000
    v_mov_b32 v{L0}, 0
    v_mov_b32 v{L1}, 0
    s_mov_b32 s23, 0
    """)
    nloop = (NTILE - D) // D
    rem = (NTILE - D) % D
    a.label("La_loop")
    for p in range(D):
        attn_tile(a, p, 8 * (D - 1) + 4, 8 * (D - 1), True)
    a(f"""
    s_add_u32 s23, s23, 1
    s_cmp_lt_u32 s23, {nloop}
    s_cbranch_scc1 La_loop
    """)
    for p in range(rem):
        attn_tile(a, p, 8 * (D - 1) + 4, 8 * (D - 1), True)
    for i in range(D):
        p = (rem + i) % D
        attn_tile(a, p, 8 * (D - 1 - i) + 4, 8 * (D - 1 - i), False)
    a("""
    v_lshrrev_b32 v4, 4, v0
    v_lshlrev_b32 v5, 9, v4
    v_and_b32 v6, 15, v0
    v_lshl_add_u32 v5, v6, 5, v5
    """)
    for i in range(2):
        a(f"ds_write_b128 v5, v[{O0+4*i}:{O0+4*i+3}] offset:{16*i}")
        a(f"ds_write_b128 v5, v[{O1+4*i}:{O1+4*i+3}] offset:{16384+16*i}")
    a(f"""
    v_lshlrev_b32 v6, 3, v4
    v_mov_b32 v{T0}, v{M0}
    v_mov_b32 v{T1}, v{L0}
    ds_write_b64 v6, v[{T0}:{T1}] offset:32768
    v_mov_b32 v{CR0}, v{M1}
    v_mov_b32 v{CR1}, v{L1}
    ds_write_b64 v6, v[{CR0}:{CR1}] offset:{32768+256}
    s_waitcnt lgkmcnt(0)
    s_barrier
    s_cmp_ge_u32 s10, 4
    s_cbranch_scc1 La_end
    v_lshrrev_b32 v4, 7, v0
    v_and_b32 v5, 127, v0
    v_lshlrev_b32 v6, 8, v4
    v_lshlrev_b32 v7, 14, v4
    v_lshl_add_u32 v7, v5, 2, v7
    """)
    for n in range(32):
        a(f"ds_read_b64 v[{32+2*n}:{33+2*n}], v6 offset:{32768+8*n}")
    a("s_waitcnt lgkmcnt(0)")
    a("v_max_f32 v8, v32, v34")
    for n in range(2, 32):
        a(f"v_max_f32 v8, v8, v{32+2*n}")
    a("v_mul_f32 v9, s20, v8")
    for n in range(32):
        a(f"v_fma_f32 v{32+2*n}, v{32+2*n}, s20, -v9")
    for n in range(32):
        a(f"v_exp_f32 v{32+2*n}, v{32+2*n}")
    for n in range(32):
        a(f"ds_read_b32 v{96+n}, v7 offset:{512*n}")
    a("v_mov_b32 v10, 0")
    a("v_mov_b32 v11, 0")
    for n in range(32):
        a(f"v_fmac_f32 v10, v{32+2*n}, v{33+2*n}")
    a("s_waitcnt lgkmcnt(0)")
    for n in range(32):
        a(f"v_fmac_f32 v11, v{32+2*n}, v{96+n}")
    a(f"""
    s_lshl_b32 s24, s2, 10
    s_add_u32 s24, s24, {APART}
    v_lshlrev_b32 v12, 2, v0
    v_add_u32 v12, s24, v12
    global_store_dword v12, v11, s[8:9]
    s_lshl_b32 s24, s2, 4
    s_add_u32 s24, s24, {AML}
    v_lshlrev_b32 v12, 3, v4
    v_add_u32 v12, s24, v12
    v_mov_b32 v14, v8
    v_mov_b32 v15, v10
    v_cmp_eq_u32 vcc, 0, v5
    s_and_saveexec_b64 s[26:27], vcc
    global_store_dwordx2 v12, v[14:15], s[8:9]
    s_mov_b64 exec, s[26:27]
    s_branch La_end
    """)
    W, X, ACC, UNP = 32, 68, 88, 120
    GU, HS = 65536, 66560
    a.label("Lffn")
    a(f"""
    s_load_dwordx2 s[4:5], s[0:1], {KA['x']}
    s_load_dwordx2 s[6:7], s[0:1], {KA['wg']}
    s_load_dwordx2 s[10:11], s[0:1], {KA['wu']}
    s_load_dwordx2 s[12:13], s[0:1], {KA['wd']}
    s_sub_u32 s14, s2, 256
    v_and_b32 v1, 63, v0
    v_lshrrev_b32 v2, 6, v0
    v_lshrrev_b32 v3, 3, v1
    v_and_b32 v4, 7, v1
    v_mul_u32_u24 v5, 72, v2
    v_add_u32 v5, v5, v3
    v_mul_u32_u24 v6, 9216, v5
    v_lshl_add_u32 v6, v4, 4, v6
    s_lshl_b32 s15, s14, 7
    v_add_u32 v6, s15, v6
    v_lshlrev_b32 v7, 1, v5
    s_mov_b32 s21, {f32hex(2.0*math.sqrt(2.0/math.pi)*math.log2(math.e))}
    s_mov_b32 s22, {f32hex(0.044715)}
    s_waitcnt lgkmcnt(0)
    """)
    for i in range(32):
        a(f"v_mov_b32 v{ACC+i}, 0")
    for mat, sb in ((0, "s[6:7]"), (1, "s[10:11]")):
        a("v_mov_b32 v8, v6")
        for i in range(9):
            a(f"global_load_dwordx4 v[{W+4*i}:{W+4*i+3}], v8, {sb}")
            a(f"v_add_u32 v8, {8*9216}, v8")
            if mat == 0:
                a(f"global_load_ushort v{X+2*i}, v7, s[4:5] offset:{16*i}")
                a(f"global_load_ushort v{X+2*i+1}, v7, s[4:5] offset:{1152+16*i}")
        for i in range(9):
            a(f"s_waitcnt vmcnt({(3 if mat == 0 else 1)*(8-i)})")
            if mat == 0:
                a(f"v_lshlrev_b32 v{X+2*i}, 16, v{X+2*i}")
                a(f"v_lshlrev_b32 v{X+2*i+1}, 16, v{X+2*i+1}")
            unpack8(a, W + 4 * i, UNP)
            for b in range(2):
                for j in range(8):
                    a(f"v_fmac_f32 v{ACC+16*mat+8*b+j}, v{X+2*i+b}, v{UNP+j}")
    a("v_lshlrev_b32 v8, 7, v0")
    for i in range(8):
        a(f"ds_write_b128 v8, v[{ACC+4*i}:{ACC+4*i+3}] offset:{16*i}")
    a("""
    s_waitcnt lgkmcnt(0)
    s_barrier
    s_cmp_ge_u32 s10, 4
    """)
    a.lines.pop()
    a("""
    v_readfirstlane_b32 s16, v2
    s_cmp_ge_u32 s16, 4
    s_cbranch_scc1 Lffn_b1
    v_lshrrev_b32 v9, 6, v0
    v_and_b32 v10, 63, v0
    v_lshrrev_b32 v11, 3, v10
    v_and_b32 v12, 7, v10
    v_lshlrev_b32 v11, 7, v11
    v_lshl_add_u32 v11, v9, 5, v11
    v_lshl_add_u32 v11, v12, 2, v11
    v_mov_b32 v13, 0
    """)
    for half in range(2):
        for n in range(32):
            a(f"ds_read_b32 v{32+n}, v11 offset:{1024*(32*half+n)}")
        a("s_waitcnt lgkmcnt(0)")
        for n in range(32):
            a(f"v_add_f32 v13, v13, v{32+n}")
    round_bf16(a, 13, 14)
    a(f"""
    v_lshlrev_b32 v14, 2, v0
    v_add_u32 v14, {GU}, v14
    ds_write_b32 v14, v13
    """)
    a.label("Lffn_b1")
    a(f"""
    s_waitcnt lgkmcnt(0)
    s_barrier
    s_cmp_ge_u32 s16, 2
    s_cbranch_scc1 Lffn_b2
    v_lshlrev_b32 v14, 2, v0
    v_add_u32 v14, {GU}, v14
    ds_read_b32 v15, v14
    ds_read_b32 v16, v14 offset:512
    s_waitcnt lgkmcnt(0)
    """)
    gelu_tanh(a, 15, 17, 18, 19)
    round_bf16(a, 17, 18)
    a("v_mul_f32 v17, v17, v16")
    round_bf16(a, 17, 18)
    a(f"ds_write_b32 v14, v17 offset:{HS-GU}")
    a.label("Lffn_b2")
    DW, DACC, DUN = 32, 96, 8
    a(f"""
    s_waitcnt lgkmcnt(0)
    s_barrier
    s_lshl_b32 s17, s14, 6
    s_lshl_b32 s18, s16, 3
    s_add_u32 s17, s17, s18
    s_mul_i32 s17, s17, 1152
    v_lshlrev_b32 v6, 5, v1
    v_add_u32 v6, s17, v6
    s_lshl_b32 s18, s16, 5
    s_add_u32 s18, s18, {HS}
    v_mov_b32 v7, s18
    v_cmp_gt_u32 vcc, 36, v1
    s_and_saveexec_b64 s[24:25], vcc
    """)
    for r in range(8):
        a(f"global_load_dwordx4 v[{DW+8*r}:{DW+8*r+3}], v6, s[12:13]")
        a(f"global_load_dwordx4 v[{DW+8*r+4}:{DW+8*r+7}], v6, s[12:13] offset:16")
        a("v_add_u32 v6, 1152, v6")
    for i in range(32):
        a(f"v_mov_b32 v{DACC+i}, 0")
    for r in range(8):
        a(f"ds_read_b32 v24, v7 offset:{4*r}")
        a(f"ds_read_b32 v25, v7 offset:{256+4*r}")
        a(f"s_waitcnt vmcnt({2*(7-r)})")
        unpack8(a, DW + 8 * r, DUN)
        unpack8(a, DW + 8 * r + 4, DUN + 8)
        a("s_waitcnt lgkmcnt(0)")
        for b in range(2):
            for j in range(16):
                a(f"v_fmac_f32 v{DACC+16*b+j}, v{24+b}, v{DUN+j}")
    a("""
    v_lshlrev_b32 v6, 6, v1
    s_mul_i32 s18, s16, 4608
    v_add_u32 v6, s18, v6
    """)
    for b in range(2):
        for i in range(4):
            a(f"ds_write_b128 v6, v[{DACC+16*b+4*i}:{DACC+16*b+4*i+3}] offset:{2304*b+16*i}")
    a("""
    s_mov_b64 exec, s[24:25]
    s_waitcnt lgkmcnt(0)
    s_barrier
    v_lshlrev_b32 v6, 2, v0
    s_mul_i32 s18, s14, 4608
    v_add_u32 v7, s18, v6
    """)
    for part in range(3):
        if part == 2:
            a("""
            v_cmp_gt_u32 vcc, 128, v0
            s_and_saveexec_b64 s[24:25], vcc
            s_cbranch_execz La_end
            """)
        for w in range(8):
            a(f"ds_read_b32 v{32+w}, v6 offset:{2048*part+4608*w}")
        a("s_waitcnt lgkmcnt(0)")
        a("v_add_f32 v8, v32, v33")
        for w in range(2, 8):
            a(f"v_add_f32 v8, v8, v{32+w}")
        a(f"global_store_dword v7, v8, s[8:9] offset:{FFNP+2048*part}" if FFNP + 2048 * part < 4096 else
          f"v_add_u32 v9, {FFNP+2048*part}, v7")
        if FFNP + 2048 * part >= 4096:
            a("global_store_dword v9, v8, s[8:9]")
    a.label("La_end")
    a("s_endpgm")
    kd(a, name, 128 + 32 * max(0, CFG["depth"] - 2))


def gen_oproj(a):
    name = "oproj_kernel"
    kstart(a, name)
    a(f"""
    s_cmp_ge_u32 s2, 288
    s_cbranch_scc1 Lo_end
    s_load_dwordx2 s[4:5], s[0:1], {KA['wo']}
    s_load_dwordx2 s[8:9], s[0:1], {KA['ws']}
    s_mov_b32 s10, 0x1c71c71d
    s_mul_hi_u32 s11, s2, s10
    s_mul_i32 s12, s11, 9
    s_sub_u32 s12, s2, s12
    v_and_b32 v1, 63, v0
    v_lshrrev_b32 v2, 6, v0
    v_lshrrev_b32 v3, 3, v1
    v_and_b32 v4, 7, v1
    v_lshl_add_u32 v5, v2, 5, v3
    s_lshl_b32 s13, s11, 7
    v_add_u32 v6, s13, v5
    v_mul_u32_u24 v6, 1152, v6
    v_lshl_add_u32 v6, v4, 4, v6
    s_lshl_b32 s14, s12, 7
    v_add_u32 v6, s14, v6
    s_mov_b32 s20, {f32hex(C_EXP)}
    s_waitcnt lgkmcnt(0)
    """)
    for i in range(4):
        a(f"global_load_dwordx4 v[{16+4*i}:{19+4*i}], v6, s[4:5]")
        a(f"v_add_u32 v6, {8*1152}, v6")
    a(f"""
    v_lshrrev_b32 v7, 7, v0
    v_and_b32 v8, 127, v0
    s_lshr_b32 s15, s11, 1
    s_and_b32 s16, s11, 1
    v_lshlrev_b32 v9, 4, v7
    v_add_u32 v9, s15, v9
    v_lshlrev_b32 v10, 7, v9
    s_lshl_b32 s17, s16, 3
    v_add_u32 v10, s17, v10
    v_lshlrev_b32 v11, 13, v9
    s_lshl_b32 s17, s16, 9
    v_add_u32 v11, s17, v11
    v_lshl_add_u32 v11, v8, 2, v11
    v_add_u32 v10, {AML}, v10
    v_add_u32 v11, {APART}, v11
    """)
    for s in range(8):
        a(f"global_load_dwordx2 v[{32+2*s}:{33+2*s}], v10, s[8:9] offset:{16*s}")
        a(f"global_load_dword v{48+s}, v11, s[8:9]")
        a("v_add_u32 v11, 1024, v11")
    a("s_waitcnt vmcnt(0)")
    a("v_max_f32 v12, v32, v34")
    for s in range(2, 8):
        a(f"v_max_f32 v12, v12, v{32+2*s}")
    a("v_mul_f32 v13, s20, v12")
    for s in range(8):
        a(f"v_fma_f32 v{32+2*s}, v{32+2*s}, s20, -v13")
    for s in range(8):
        a(f"v_exp_f32 v{32+2*s}, v{32+2*s}")
    a("v_mov_b32 v14, 0")
    a("v_mov_b32 v15, 0")
    for s in range(8):
        a(f"v_fmac_f32 v14, v{32+2*s}, v{33+2*s}")
        a(f"v_fmac_f32 v15, v{32+2*s}, v{48+s}")
    a("v_rcp_f32 v14, v14")
    a("v_mul_f32 v15, v15, v14")
    round_bf16(a, 15, 14)
    a("""
    v_lshlrev_b32 v14, 2, v0
    ds_write_b32 v14, v15
    s_waitcnt lgkmcnt(0)
    s_barrier
    v_lshlrev_b32 v14, 2, v5
    """)
    for i in range(16):
        a(f"v_mov_b32 v{56+i}, 0")
    for i in range(4):
        a(f"ds_read_b32 v{32+2*i}, v14 offset:{32*i}")
        a(f"ds_read_b32 v{33+2*i}, v14 offset:{512+32*i}")
    a("s_waitcnt lgkmcnt(0)")
    for i in range(4):
        unpack8(a, 16 + 4 * i, 40)
        for b in range(2):
            for j in range(8):
                a(f"v_fmac_f32 v{56+8*b+j}, v{32+2*i+b}, v{40+j}")
    a("v_lshlrev_b32 v14, 6, v0")
    for i in range(4):
        a(f"ds_write_b128 v14, v[{56+4*i}:{59+4*i}] offset:{1024+16*i}")
    a("""
    s_waitcnt lgkmcnt(0)
    s_barrier
    v_cmp_gt_u32 vcc, 128, v0
    s_and_saveexec_b64 s[18:19], vcc
    s_cbranch_execz Lo_end
    v_lshrrev_b32 v9, 6, v0
    v_and_b32 v10, 63, v0
    v_lshrrev_b32 v11, 3, v10
    v_and_b32 v12, 7, v10
    v_lshlrev_b32 v11, 6, v11
    v_lshl_add_u32 v12, v9, 3, v12
    v_lshl_add_u32 v11, v12, 2, v11
    v_mov_b32 v13, 0
    """)
    for n in range(32):
        a(f"ds_read_b32 v{20+n}, v11 offset:{1024+512*n}")
    a("s_waitcnt lgkmcnt(0)")
    for n in range(32):
        a(f"v_add_f32 v13, v13, v{20+n}")
    a(f"""
    s_lshl_b32 s17, s12, 5
    s_add_u32 s17, s17, s11
    s_lshl_b32 s17, s17, 9
    s_add_u32 s17, s17, {OPART}
    v_lshlrev_b32 v14, 2, v0
    v_add_u32 v14, s17, v14
    global_store_dword v14, v13, s[8:9]
    """)
    a.label("Lo_end")
    a("s_endpgm")
    kd(a, name, 72)


def gen_final(a):
    name = "final_kernel"
    kstart(a, name)
    a(f"""
    s_cmp_ge_u32 s2, 9
    s_cbranch_scc1 Lf_end
    s_load_dwordx2 s[4:5], s[0:1], {KA['x']}
    s_load_dwordx2 s[6:7], s[0:1], {KA['gw']}
    s_load_dwordx2 s[8:9], s[0:1], {KA['ws']}
    s_load_dwordx2 s[10:11], s[0:1], {KA['out']}
    v_and_b32 v1, 63, v0
    v_lshrrev_b32 v2, 6, v0
    v_mul_u32_u24 v3, 1152, v2
    v_lshl_add_u32 v3, v1, 1, v3
    v_lshlrev_b32 v4, 1, v1
    s_waitcnt lgkmcnt(0)
    """)
    for i in range(9):
        a(f"global_load_ushort v{16+i}, v3, s[4:5] offset:{128*i}")
        a(f"global_load_ushort v{32+i}, v4, s[6:7] offset:{128*i}")
    a(f"""
    s_lshl_b32 s12, s2, 14
    s_add_u32 s12, s12, {OPART}
    v_lshlrev_b32 v5, 8, v2
    v_lshl_add_u32 v5, v1, 2, v5
    v_add_u32 v5, s12, v5
    s_lshl_b32 s13, s2, 8
    s_add_u32 s13, s13, {FFNP}
    v_mul_u32_u24 v6, 2304, v2
    v_lshl_add_u32 v6, v1, 2, v6
    v_add_u32 v6, s13, v6
    v_mov_b32 v7, 0
    v_mov_b32 v8, 0
    """)
    for blk in range(2):
        for n in range(16):
            a(f"global_load_dword v{48+n}, v5, s[8:9] offset:{512*(n%8)}")
            if n == 7:
                a("v_add_u32 v5, 4096, v5")
        a("v_add_u32 v5, 4096, v5")
        a("s_waitcnt vmcnt(0)")
        for n in range(16):
            a(f"v_add_f32 v7, v7, v{48+n}")
    for blk in range(9):
        for n in range(8):
            a(f"global_load_dword v{48+n}, v6, s[8:9]")
            a("v_add_u32 v6, 4608, v6")
        a("s_waitcnt vmcnt(0)")
        for n in range(8):
            a(f"v_add_f32 v8, v8, v{48+n}")
    a("v_mov_b32 v9, 0")
    for i in range(9):
        a(f"v_lshlrev_b32 v{16+i}, 16, v{16+i}")
        a(f"v_lshlrev_b32 v{32+i}, 16, v{32+i}")
        a(f"v_mul_f32 v{16+i}, v{16+i}, v{32+i}")
        round_bf16(a, 16 + i, 10)
        a(f"v_add_f32 v9, v9, v{16+i}")
    a("""
    v_lshlrev_b32 v10, 2, v0
    ds_write_b32 v10, v9
    s_waitcnt lgkmcnt(0)
    s_barrier
    v_lshlrev_b32 v10, 8, v2
    v_mov_b32 v9, 0
    """)
    for half in range(2):
        for n in range(32):
            a(f"ds_read_b32 v{48+n}, v10 offset:{4*(32*half+n)}")
        a("s_waitcnt lgkmcnt(0)")
        for n in range(32):
            a(f"v_add_f32 v9, v9, v{48+n}")
    round_bf16(a, 9, 10)
    a(f"""
    s_mov_b32 s14, {f32hex(-math.log2(math.e))}
    v_mul_f32 v10, s14, v9
    v_exp_f32 v10, v10
    v_add_f32 v10, 1.0, v10
    v_rcp_f32 v10, v10
    """)
    round_bf16(a, 10, 11)
    round_bf16(a, 7, 11)
    round_bf16(a, 8, 11)
    a("v_mul_f32 v12, v10, v7")
    round_bf16(a, 12, 11)
    a("v_sub_f32 v13, 1.0, v10")
    round_bf16(a, 13, 11)
    a("v_mul_f32 v13, v13, v8")
    round_bf16(a, 13, 11)
    a("v_add_f32 v12, v12, v13")
    a("v_cvt_pk_bf16_f32 v12, v12, v12")
    a("""
    s_lshl_b32 s15, s2, 7
    v_mul_u32_u24 v14, 1152, v2
    v_lshl_add_u32 v14, v1, 1, v14
    v_add_u32 v14, s15, v14
    global_store_short v14, v12, s[10:11]
    """)
    a.label("Lf_end")
    a("s_endpgm")
    kd(a, name, 80)


HEADER = f"""; gated GQA decode attention + GEGLU FFN, mixed by a sigmoid gate.  Generated by dev/gen.py
; Kernarg: x,k,v,wq,wo,Bx,wg,wu,wd,gate_w,out,dbg,ws (8 bytes each)
; @launch kernel=qproj_kernel grid=(192,1,1) block=(256,1,1) lds=16384
; @launch kernel={NAME}_kernel grid=(328,1,1) block=(512,1,1) lds=67584
; @launch kernel=oproj_kernel grid=(288,1,1) block=(256,1,1) lds=17408
; @launch kernel=final_kernel grid=(9,1,1) block=(128,1,1) lds=1024
.amdgcn_target "amdgcn-amd-amdhsa--gfx950"
.text
"""


def main():
    out = OUT
    for arg in sys.argv[1:]:
        k, v = arg.split("=")
        if k == "out":
            out = v
        elif k == "nt":
            CFG["nt"] = " nt" if v == "1" else ""
        else:
            CFG[k] = int(v)
    a = Asm()
    a.raw(HEADER)
    gen_qproj(a)
    gen_attn(a)
    gen_oproj(a)
    gen_final(a)
    with open(out, "w") as f:
        f.write(a.text())
    print("wrote", out, len(a.text()), "bytes")


if __name__ == "__main__":
    main()
```

```python
import math
import os
import sys

sys.path.insert(0, os.path.dirname(os.path.abspath(__file__)))
from asmdsl import Asm, f32hex

NAME = "gated_mix__gqa_block_cached__glu_gated_geglu__decode"
OUT = os.path.join(os.path.dirname(os.path.abspath(__file__)), "..", "cdna_kernels", NAME + ".s")

QPART = 0x0
APART = 0x20000
AML = 0x60000
FFNP = 0x80000
OPART = 0x100000

C_EXP = math.log2(math.e) / math.sqrt(128.0)
KA = dict(x=0, k=8, v=16, wq=24, wo=32, bx=40, wg=48, wu=56, wd=64, gw=72, out=80, dbg=88, ws=96)


def kd(a, name, vgpr, sgpr=64):
    acc = (vgpr + 3) // 4 * 4
    a.raw(f""".section .rodata,"a"
.p2align 6
.amdhsa_kernel {name}
  .amdhsa_next_free_vgpr {vgpr}
  .amdhsa_next_free_sgpr {sgpr}
  .amdhsa_accum_offset {acc}
  .amdhsa_group_segment_fixed_size 0
  .amdhsa_kernarg_size 104
  .amdhsa_user_sgpr_count 2
  .amdhsa_user_sgpr_kernarg_segment_ptr 1
  .amdhsa_system_sgpr_workgroup_id_x 1
.end_amdhsa_kernel
.text""")


def kstart(a, name):
    a.raw(f""".globl {name}
.p2align 8
.type {name},@function
{name}:""")
    a.reset()


def unpack8(a, src, dst):
    for i in range(4):
        a(f"v_lshlrev_b32 v{dst+2*i}, 16, v{src+i}")
        a(f"v_and_b32 v{dst+2*i+1}, 0xffff0000, v{src+i}")


def round_bf16(a, reg, tmp):
    a(f"v_cvt_pk_bf16_f32 v{tmp}, v{reg}, v{reg}")
    a(f"v_and_b32 v{reg}, 0xffff0000, v{tmp}")


def gen_qproj(a):
    name = "qproj_kernel"
    kstart(a, name)
    a(f"""
    s_cmp_ge_u32 s2, 192
    s_cbranch_scc1 Lq_end
    s_load_dwordx2 s[4:5], s[0:1], {KA['x']}
    s_load_dwordx2 s[6:7], s[0:1], {KA['wq']}
    s_load_dwordx2 s[8:9], s[0:1], {KA['ws']}
    s_and_b32 s10, s2, 63
    s_lshr_b32 s11, s2, 6
    v_and_b32 v1, 63, v0
    v_lshrrev_b32 v2, 6, v0
    v_lshrrev_b32 v3, 3, v1
    v_and_b32 v4, 7, v1
    v_mul_u32_u24 v5, 48, v2
    v_add_u32 v5, v5, v3
    s_mul_i32 s12, s11, 192
    v_add_u32 v5, s12, v5
    v_lshlrev_b32 v6, 13, v5
    v_lshlrev_b32 v7, 4, v4
    v_add_u32 v6, v6, v7
    s_lshl_b32 s13, s10, 7
    v_add_u32 v6, s13, v6
    v_lshlrev_b32 v7, 1, v5
    s_waitcnt lgkmcnt(0)
    """)
    for i in range(6):
        a(f"global_load_dwordx4 v[{16+4*i}:{19+4*i}], v6, s[6:7]")
        a("v_add_u32 v6, 0x10000, v6")
        a(f"global_load_ushort v{40+2*i}, v7, s[4:5] offset:{16*i}")
        a(f"global_load_ushort v{41+2*i}, v7, s[4:5] offset:{1152+16*i}")
    for i in range(16):
        a(f"v_mov_b32 v{60+i}, 0")
    for i in range(6):
        a(f"s_waitcnt vmcnt({3*(5-i)})")
        a(f"v_lshlrev_b32 v{40+2*i}, 16, v{40+2*i}")
        a(f"v_lshlrev_b32 v{41+2*i}, 16, v{41+2*i}")
        unpack8(a, 16 + 4 * i, 52)
        for b in range(2):
            for j in range(8):
                a(f"v_fmac_f32 v{60+8*b+j}, v{40+2*i+b}, v{52+j}")
    a("v_lshlrev_b32 v8, 6, v0")
    for i in range(4):
        a(f"ds_write_b128 v8, v[{60+4*i}:{63+4*i}] offset:{16*i}")
    a("""
    s_waitcnt lgkmcnt(0)
    s_barrier
    v_cmp_gt_u32 vcc, 128, v0
    s_and_saveexec_b64 s[14:15], vcc
    s_cbranch_execz Lq_end
    v_lshrrev_b32 v9, 6, v0
    v_and_b32 v10, 63, v0
    v_lshrrev_b32 v11, 3, v10
    v_and_b32 v12, 7, v10
    v_lshlrev_b32 v11, 6, v11
    v_lshl_add_u32 v12, v9, 3, v12
    v_lshl_add_u32 v11, v12, 2, v11
    v_mov_b32 v13, 0
    """)
    for n in range(32):
        a(f"ds_read_b32 v{20+n}, v11 offset:{512*n}")
    a("s_waitcnt lgkmcnt(0)")
    for n in range(32):
        a(f"v_add_f32 v13, v13, v{20+n}")
    a("""
    s_lshl_b32 s16, s11, 1
    v_add_u32 v14, s16, v9
    v_lshlrev_b32 v14, 12, v14
    v_add_u32 v14, v14, v10
    s_lshl_b32 s17, s10, 6
    v_add_u32 v14, s17, v14
    v_lshlrev_b32 v14, 2, v14
    """)
    a(f"global_store_dword v14, v13, s[8:9] offset:{QPART}")
    a.label("Lq_end")
    a("s_endpgm")
    kd(a, name, 80)


CFG = dict(depth=3, nt=" nt", mode=2)
Q0, Q1 = 96, 100
SS = 104
VF = 112
O0, O1 = 8, 16
M0, M1, L0, L1 = 24, 25, 26, 27
T0, T1, CR0, CR1 = 28, 29, 30, 31
MC0, MC1 = 120, 121
NTILE = 32
QR = [list(range(8, 24)), list(range(104, 120)), list(range(24, 32)) + list(range(120, 128))]


def kbuf(par):
    return (32 + 32 * par) if par < 2 else 128 + 32 * (par - 2)


def attn_issue(a, par):
    kb = kbuf(par)
    vb = kb + 16
    nt = CFG["nt"]
    for j in range(4):
        a(f"global_load_dwordx4 v[{kb+4*j}:{kb+4*j+3}], v2, s[4:5] offset:{1024*j}{nt}")
    for j in range(4):
        a(f"global_load_dwordx4 v[{vb+4*j}:{vb+4*j+3}], v2, s[6:7] offset:{1024*j}{nt}")
    mode = CFG.get("mode", 0)
    if mode == 1:
        a("""
        s_add_u32 s32, s32, 1
        s_and_b32 s33, s32, 31
        s_lshl_b32 s33, s33, 12
        s_add_u32 s4, s28, s33
        s_addc_u32 s5, s29, 0
        s_add_u32 s6, s30, s33
        s_addc_u32 s7, s31, 0
        """)
    else:
        step = 32768 if mode == 2 else 4096
        a(f"""
        s_add_u32 s4, s4, {step}
        s_addc_u32 s5, s5, 0
        s_add_u32 s6, s6, {step}
        s_addc_u32 s7, s7, 0
        """)


def attn_tile(a, par, waitk, waitv, issue):
    kb = kbuf(par)
    vb = kb + 16
    if CFG.get("strip"):
        a(f"s_waitcnt vmcnt({waitv})")
        for j in range(4):
            a(f"v_or_b32 v{O0+j}, v{O0+j}, v{kb+4*j}")
            a(f"v_or_b32 v{O1+j}, v{O1+j}, v{vb+4*j}")
        if issue:
            attn_issue(a, par)
        return
    a(f"s_waitcnt vmcnt({waitk})")
    for j in range(4):
        for h in range(2):
            q = Q0 if h == 0 else Q1
            s = SS + 2 * j + h
            a(f"v_dot2_f32_bf16 v{s}, v{kb+4*j}, v{q}, 0")
            for i in range(1, 4):
                a(f"v_dot2_f32_bf16 v{s}, v{kb+4*j+i}, v{q+i}, v{s}")
    for stage in ("quad_perm:[1,0,3,2]", "quad_perm:[2,3,0,1]", "row_ror:4", "row_ror:8"):
        for n in range(8):
            a(f"v_add_f32_dpp v{SS+n}, v{SS+n}, v{SS+n} {stage} row_mask:0xf bank_mask:0xf")
    for h, (m, t, cr, mc, l, o) in enumerate(((M0, T0, CR0, MC0, L0, O0), (M1, T1, CR1, MC1, L1, O1))):
        a(f"v_max3_f32 v{t}, v{SS+h}, v{SS+2+h}, v{SS+4+h}")
        a(f"v_max3_f32 v{t}, v{t}, v{SS+6+h}, v{m}")
        a(f"v_sub_f32 v{cr}, v{m}, v{t}")
        a(f"v_mul_f32 v{cr}, s20, v{cr}")
        a(f"v_mul_f32 v{mc}, s20, v{t}")
        a(f"v_exp_f32 v{cr}, v{cr}")
        a(f"v_mov_b32 v{m}, v{t}")
        for j in range(4):
            a(f"v_fma_f32 v{SS+2*j+h}, v{SS+2*j+h}, s20, -v{mc}")
        for j in range(4):
            a(f"v_exp_f32 v{SS+2*j+h}, v{SS+2*j+h}")
        a(f"v_mul_f32 v{l}, v{l}, v{cr}")
        for i in range(8):
            a(f"v_mul_f32 v{o+i}, v{o+i}, v{cr}")
        a(f"v_add_f32 v{t}, v{SS+h}, v{SS+2+h}")
        a(f"v_add_f32 v{l}, v{l}, v{t}")
        a(f"v_add_f32 v{t}, v{SS+4+h}, v{SS+6+h}")
        a(f"v_add_f32 v{l}, v{l}, v{t}")
    a(f"s_waitcnt vmcnt({waitv})")
    for j in range(4):
        unpack8(a, vb + 4 * j, VF)
        for i in range(8):
            a(f"v_fmac_f32 v{O0+i}, v{SS+2*j}, v{VF+i}")
            a(f"v_fmac_f32 v{O1+i}, v{SS+2*j+1}, v{VF+i}")
    if issue:
        attn_issue(a, par)


def gelu_tanh(a, x, out, t1, t2):
    a(f"v_mul_f32 v{t1}, v{x}, v{x}")
    a(f"v_mul_f32 v{t1}, v{t1}, v{x}")
    a(f"v_fma_f32 v{t1}, v{t1}, s22, v{x}")
    a(f"v_mul_f32 v{t1}, s21, v{t1}")
    a(f"v_exp_f32 v{t1}, v{t1}")
    a(f"v_add_f32 v{t1}, 1.0, v{t1}")
    a(f"v_rcp_f32 v{t1}, v{t1}")
    a(f"v_fma_f32 v{t2}, v{t1}, -2.0, 1.0")
    a(f"v_add_f32 v{t2}, 1.0, v{t2}")
    a(f"v_mul_f32 v{t2}, 0.5, v{t2}")
    a(f"v_mul_f32 v{out}, v{x}, v{t2}")


def gen_attn(a):
    name = NAME + "_kernel"
    kstart(a, name)
    a(f"""
    s_cmp_ge_u32 s2, 328
    s_cbranch_scc1 La_end
    s_load_dwordx2 s[8:9], s[0:1], {KA['ws']}
    s_cmp_ge_u32 s2, 256
    s_cbranch_scc1 Lffn
    s_load_dwordx2 s[4:5], s[0:1], {KA['k']}
    s_load_dwordx2 s[6:7], s[0:1], {KA['v']}
    v_and_b32 v1, 63, v0
    v_lshlrev_b32 v2, 4, v1
    v_lshrrev_b32 v3, 6, v0
    v_readfirstlane_b32 s10, v3
    s_lshr_b32 s11, s2, 3
    s_and_b32 s12, s2, 7
    s_lshl_b32 s13, s11, 23
    s_lshl_b32 s14, s12, 20
    s_add_u32 s13, s13, s14
    s_lshl_b32 s14, s10, {12 if CFG.get("mode",0)==2 else 17}
    s_add_u32 s13, s13, s14
    s_mov_b32 s20, {f32hex(C_EXP)}
    s_lshr_b32 s15, s11, 4
    s_and_b32 s16, s11, 15
    s_lshl_b32 s15, s15, 14
    s_lshl_b32 s16, s16, 10
    s_add_u32 s15, s15, s16
    v_and_b32 v4, 15, v1
    v_lshlrev_b32 v4, 5, v4
    s_waitcnt lgkmcnt(0)
    s_add_u32 s4, s4, s13
    s_addc_u32 s5, s5, 0
    s_add_u32 s6, s6, s13
    s_addc_u32 s7, s7, 0
    s_add_u32 s18, s8, s15
    s_addc_u32 s19, s9, 0
    """)
    if CFG.get("mode", 0) == 1:
        a("""
        s_mov_b32 s28, s4
        s_mov_b32 s29, s5
        s_mov_b32 s30, s6
        s_mov_b32 s31, s7
        s_lshl_b32 s32, s10, 2
        s_mul_i32 s33, s2, 5
        s_add_u32 s32, s32, s33
        s_and_b32 s33, s32, 31
        s_lshl_b32 s33, s33, 12
        s_add_u32 s4, s28, s33
        s_addc_u32 s5, s29, 0
        s_add_u32 s6, s30, s33
        s_addc_u32 s7, s31, 0
        """)
    for ks in range(3):
        for h in range(2):
            for half in range(2):
                r = QR[ks][h * 8 + half * 4]
                a(f"global_load_dwordx4 v[{r}:{r+3}], v4, s[18:19] offset:{QPART + h*512 + half*16}")
        if ks < 2:
            a("v_add_u32 v4, 0x8000, v4")
    D = CFG["depth"]
    for p in range(D):
        attn_issue(a, p)
    a(f"s_waitcnt vmcnt({8*D})")
    for n in range(16):
        a(f"v_add_f32 v{QR[0][n]}, v{QR[0][n]}, v{QR[1][n]}")
    for n in range(16):
        a(f"v_add_f32 v{QR[0][n]}, v{QR[0][n]}, v{QR[2][n]}")
    for h in range(2):
        for i in range(4):
            q = Q0 if h == 0 else Q1
            a(f"v_cvt_pk_bf16_f32 v{q+i}, v{QR[0][h*8+2*i]}, v{QR[0][h*8+2*i+1]}")
    for i in range(8):
        a(f"v_mov_b32 v{O0+i}, 0")
        a(f"v_mov_b32 v{O1+i}, 0")
    a(f"""
    v_mov_b32 v{M0}, 0xff800000
    v_mov_b32 v{M1}, 0xff800000
    v_mov_b32 v{L0}, 0
    v_mov_b32 v{L1}, 0
    s_mov_b32 s23, 0
    """)
    nloop = (NTILE - D) // D
    rem = (NTILE - D) % D
    a.label("La_loop")
    for p in range(D):
        attn_tile(a, p, 8 * (D - 1) + 4, 8 * (D - 1), True)
    a(f"""
    s_add_u32 s23, s23, 1
    s_cmp_lt_u32 s23, {nloop}
    s_cbranch_scc1 La_loop
    """)
    for p in range(rem):
        attn_tile(a, p, 8 * (D - 1) + 4, 8 * (D - 1), True)
    for i in range(D):
        p = (rem + i) % D
        attn_tile(a, p, 8 * (D - 1 - i) + 4, 8 * (D - 1 - i), False)
    a("""
    v_lshrrev_b32 v4, 4, v0
    v_lshlrev_b32 v5, 9, v4
    v_and_b32 v6, 15, v0
    v_lshl_add_u32 v5, v6, 5, v5
    """)
    for i in range(2):
        a(f"ds_write_b128 v5, v[{O0+4*i}:{O0+4*i+3}] offset:{16*i}")
        a(f"ds_write_b128 v5, v[{O1+4*i}:{O1+4*i+3}] offset:{16384+16*i}")
    a(f"""
    v_lshlrev_b32 v6, 3, v4
    v_mov_b32 v{T0}, v{M0}
    v_mov_b32 v{T1}, v{L0}
    ds_write_b64 v6, v[{T0}:{T1}] offset:32768
    v_mov_b32 v{CR0}, v{M1}
    v_mov_b32 v{CR1}, v{L1}
    ds_write_b64 v6, v[{CR0}:{CR1}] offset:{32768+256}
    s_waitcnt lgkmcnt(0)
    s_barrier
    s_cmp_ge_u32 s10, 4
    s_cbranch_scc1 La_end
    v_lshrrev_b32 v4, 7, v0
    v_and_b32 v5, 127, v0
    v_lshlrev_b32 v6, 8, v4
    v_lshlrev_b32 v7, 14, v4
    v_lshl_add_u32 v7, v5, 2, v7
    """)
    for n in range(32):
        a(f"ds_read_b64 v[{32+2*n}:{33+2*n}], v6 offset:{32768+8*n}")
    a("s_waitcnt lgkmcnt(0)")
    a("v_max_f32 v8, v32, v34")
    for n in range(2, 32):
        a(f"v_max_f32 v8, v8, v{32+2*n}")
    a("v_mul_f32 v9, s20, v8")
    for n in range(32):
        a(f"v_fma_f32 v{32+2*n}, v{32+2*n}, s20, -v9")
    for n in range(32):
        a(f"v_exp_f32 v{32+2*n}, v{32+2*n}")
    for n in range(32):
        a(f"ds_read_b32 v{96+n}, v7 offset:{512*n}")
    a("v_mov_b32 v10, 0")
    a("v_mov_b32 v11, 0")
    for n in range(32):
        a(f"v_fmac_f32 v10, v{32+2*n}, v{33+2*n}")
    a("s_waitcnt lgkmcnt(0)")
    for n in range(32):
        a(f"v_fmac_f32 v11, v{32+2*n}, v{96+n}")
    a(f"""
    s_lshl_b32 s24, s2, 10
    s_add_u32 s24, s24, {APART}
    v_lshlrev_b32 v12, 2, v0
    v_add_u32 v12, s24, v12
    global_store_dword v12, v11, s[8:9]
    s_lshl_b32 s24, s2, 4
    s_add_u32 s24, s24, {AML}
    v_lshlrev_b32 v12, 3, v4
    v_add_u32 v12, s24, v12
    v_mov_b32 v14, v8
    v_mov_b32 v15, v10
    v_cmp_eq_u32 vcc, 0, v5
    s_and_saveexec_b64 s[26:27], vcc
    global_store_dwordx2 v12, v[14:15], s[8:9]
    s_mov_b64 exec, s[26:27]
    s_branch La_end
    """)
    W, X, ACC, UNP = 32, 68, 88, 120
    GU, HS = 65536, 66560
    a.label("Lffn")
    a(f"""
    s_load_dwordx2 s[4:5], s[0:1], {KA['x']}
    s_load_dwordx2 s[6:7], s[0:1], {KA['wg']}
    s_load_dwordx2 s[10:11], s[0:1], {KA['wu']}
    s_load_dwordx2 s[12:13], s[0:1], {KA['wd']}
    s_sub_u32 s14, s2, 256
    v_and_b32 v1, 63, v0
    v_lshrrev_b32 v2, 6, v0
    v_lshrrev_b32 v3, 3, v1
    v_and_b32 v4, 7, v1
    v_mul_u32_u24 v5, 72, v2
    v_add_u32 v5, v5, v3
    v_mul_u32_u24 v6, 9216, v5
    v_lshl_add_u32 v6, v4, 4, v6
    s_lshl_b32 s15, s14, 7
    v_add_u32 v6, s15, v6
    v_lshlrev_b32 v7, 1, v5
    s_mov_b32 s21, {f32hex(2.0*math.sqrt(2.0/math.pi)*math.log2(math.e))}
    s_mov_b32 s22, {f32hex(0.044715)}
    s_waitcnt lgkmcnt(0)
    """)
    for i in range(32):
        a(f"v_mov_b32 v{ACC+i}, 0")
    for mat, sb in ((0, "s[6:7]"), (1, "s[10:11]")):
        a("v_mov_b32 v8, v6")
        for i in range(9):
            a(f"global_load_dwordx4 v[{W+4*i}:{W+4*i+3}], v8, {sb}")
            a(f"v_add_u32 v8, {8*9216}, v8")
            if mat == 0:
                a(f"global_load_ushort v{X+2*i}, v7, s[4:5] offset:{16*i}")
                a(f"global_load_ushort v{X+2*i+1}, v7, s[4:5] offset:{1152+16*i}")
        for i in range(9):
            a(f"s_waitcnt vmcnt({(3 if mat == 0 else 1)*(8-i)})")
            if mat == 0:
                a(f"v_lshlrev_b32 v{X+2*i}, 16, v{X+2*i}")
                a(f"v_lshlrev_b32 v{X+2*i+1}, 16, v{X+2*i+1}")
            unpack8(a, W + 4 * i, UNP)
            for b in range(2):
                for j in range(8):
                    a(f"v_fmac_f32 v{ACC+16*mat+8*b+j}, v{X+2*i+b}, v{UNP+j}")
    a("v_lshlrev_b32 v8, 7, v0")
    for i in range(8):
        a(f"ds_write_b128 v8, v[{ACC+4*i}:{ACC+4*i+3}] offset:{16*i}")
    a("""
    s_waitcnt lgkmcnt(0)
    s_barrier
    s_cmp_ge_u32 s10, 4
    """)
    a.lines.pop()
    a("""
    v_readfirstlane_b32 s16, v2
    s_cmp_ge_u32 s16, 4
    s_cbranch_scc1 Lffn_b1
    v_lshrrev_b32 v9, 6, v0
    v_and_b32 v10, 63, v0
    v_lshrrev_b32 v11, 3, v10
    v_and_b32 v12, 7, v10
    v_lshlrev_b32 v11, 7, v11
    v_lshl_add_u32 v11, v9, 5, v11
    v_lshl_add_u32 v11, v12, 2, v11
    v_mov_b32 v13, 0
    """)
    for half in range(2):
        for n in range(32):
            a(f"ds_read_b32 v{32+n}, v11 offset:{1024*(32*half+n)}")
        a("s_waitcnt lgkmcnt(0)")
        for n in range(32):
            a(f"v_add_f32 v13, v13, v{32+n}")
    round_bf16(a, 13, 14)
    a(f"""
    v_lshlrev_b32 v14, 2, v0
    v_add_u32 v14, {GU}, v14
    ds_write_b32 v14, v13
    """)
    a.label("Lffn_b1")
    a(f"""
    s_waitcnt lgkmcnt(0)
    s_barrier
    s_cmp_ge_u32 s16, 2
    s_cbranch_scc1 Lffn_b2
    v_lshlrev_b32 v14, 2, v0
    v_add_u32 v14, {GU}, v14
    ds_read_b32 v15, v14
    ds_read_b32 v16, v14 offset:512
    s_waitcnt lgkmcnt(0)
    """)
    gelu_tanh(a, 15, 17, 18, 19)
    round_bf16(a, 17, 18)
    a("v_mul_f32 v17, v17, v16")
    round_bf16(a, 17, 18)
    a(f"ds_write_b32 v14, v17 offset:{HS-GU}")
    a.label("Lffn_b2")
    DW, DACC, DUN = 32, 96, 8
    a(f"""
    s_waitcnt lgkmcnt(0)
    s_barrier
    s_lshl_b32 s17, s14, 6
    s_lshl_b32 s18, s16, 3
    s_add_u32 s17, s17, s18
    s_mul_i32 s17, s17, 1152
    v_lshlrev_b32 v6, 5, v1
    v_add_u32 v6, s17, v6
    s_lshl_b32 s18, s16, 5
    s_add_u32 s18, s18, {HS}
    v_mov_b32 v7, s18
    v_cmp_gt_u32 vcc, 36, v1
    s_and_saveexec_b64 s[24:25], vcc
    """)
    for r in range(8):
        a(f"global_load_dwordx4 v[{DW+8*r}:{DW+8*r+3}], v6, s[12:13]")
        a(f"global_load_dwordx4 v[{DW+8*r+4}:{DW+8*r+7}], v6, s[12:13] offset:16")
        a("v_add_u32 v6, 1152, v6")
    for i in range(32):
        a(f"v_mov_b32 v{DACC+i}, 0")
    for r in range(8):
        a(f"ds_read_b32 v24, v7 offset:{4*r}")
        a(f"ds_read_b32 v25, v7 offset:{256+4*r}")
        a(f"s_waitcnt vmcnt({2*(7-r)})")
        unpack8(a, DW + 8 * r, DUN)
        unpack8(a, DW + 8 * r + 4, DUN + 8)
        a("s_waitcnt lgkmcnt(0)")
        for b in range(2):
            for j in range(16):
                a(f"v_fmac_f32 v{DACC+16*b+j}, v{24+b}, v{DUN+j}")
    a("""
    v_lshlrev_b32 v6, 6, v1
    s_mul_i32 s18, s16, 4608
    v_add_u32 v6, s18, v6
    """)
    for b in range(2):
        for i in range(4):
            a(f"ds_write_b128 v6, v[{DACC+16*b+4*i}:{DACC+16*b+4*i+3}] offset:{2304*b+16*i}")
    a("""
    s_mov_b64 exec, s[24:25]
    s_waitcnt lgkmcnt(0)
    s_barrier
    v_lshlrev_b32 v6, 2, v0
    s_mul_i32 s18, s14, 4608
    v_add_u32 v7, s18, v6
    """)
    for part in range(3):
        if part == 2:
            a("""
            v_cmp_gt_u32 vcc, 128, v0
            s_and_saveexec_b64 s[24:25], vcc
            s_cbranch_execz La_end
            """)
        for w in range(8):
            a(f"ds_read_b32 v{32+w}, v6 offset:{2048*part+4608*w}")
        a("s_waitcnt lgkmcnt(0)")
        a("v_add_f32 v8, v32, v33")
        for w in range(2, 8):
            a(f"v_add_f32 v8, v8, v{32+w}")
        a(f"global_store_dword v7, v8, s[8:9] offset:{FFNP+2048*part}" if FFNP + 2048 * part < 4096 else
          f"v_add_u32 v9, {FFNP+2048*part}, v7")
        if FFNP + 2048 * part >= 4096:
            a("global_store_dword v9, v8, s[8:9]")
    a.label("La_end")
    a("s_endpgm")
    kd(a, name, 128 + 32 * max(0, CFG["depth"] - 2))


def gen_oproj(a):
    name = "oproj_kernel"
    kstart(a, name)
    a(f"""
    s_cmp_ge_u32 s2, 288
    s_cbranch_scc1 Lo_end
    s_load_dwordx2 s[4:5], s[0:1], {KA['wo']}
    s_load_dwordx2 s[8:9], s[0:1], {KA['ws']}
    s_load_dwordx2 s[24:25], s[0:1], {KA['x']}
    s_load_dwordx2 s[26:27], s[0:1], {KA['gw']}
    s_load_dwordx2 s[28:29], s[0:1], {KA['out']}
    s_load_dwordx2 s[30:31], s[0:1], {KA['dbg']}
    s_mov_b32 s10, 0x1c71c71d
    s_mul_hi_u32 s11, s2, s10
    s_mul_i32 s12, s11, 9
    s_sub_u32 s12, s2, s12
    v_and_b32 v1, 63, v0
    v_lshrrev_b32 v2, 6, v0
    v_lshrrev_b32 v3, 3, v1
    v_and_b32 v4, 7, v1
    v_lshl_add_u32 v5, v2, 5, v3
    s_lshl_b32 s13, s11, 7
    v_add_u32 v6, s13, v5
    v_mul_u32_u24 v6, 1152, v6
    v_lshl_add_u32 v6, v4, 4, v6
    s_lshl_b32 s14, s12, 7
    v_add_u32 v6, s14, v6
    s_mov_b32 s20, {f32hex(C_EXP)}
    s_waitcnt lgkmcnt(0)
    """)
    for i in range(4):
        a(f"global_load_dwordx4 v[{16+4*i}:{19+4*i}], v6, s[4:5]")
        a(f"v_add_u32 v6, {8*1152}, v6")
    a(f"""
    v_lshrrev_b32 v7, 7, v0
    v_and_b32 v8, 127, v0
    s_lshr_b32 s15, s11, 1
    s_and_b32 s16, s11, 1
    v_lshlrev_b32 v9, 4, v7
    v_add_u32 v9, s15, v9
    v_lshlrev_b32 v10, 7, v9
    s_lshl_b32 s17, s16, 3
    v_add_u32 v10, s17, v10
    v_lshlrev_b32 v11, 13, v9
    s_lshl_b32 s17, s16, 9
    v_add_u32 v11, s17, v11
    v_lshl_add_u32 v11, v8, 2, v11
    v_add_u32 v10, {AML}, v10
    v_add_u32 v11, {APART}, v11
    """)
    for s in range(8):
        a(f"global_load_dwordx2 v[{32+2*s}:{33+2*s}], v10, s[8:9] offset:{16*s}")
        a(f"global_load_dword v{48+s}, v11, s[8:9]")
        a("v_add_u32 v11, 1024, v11")
    a("s_waitcnt vmcnt(0)")
    a("v_max_f32 v12, v32, v34")
    for s in range(2, 8):
        a(f"v_max_f32 v12, v12, v{32+2*s}")
    a("v_mul_f32 v13, s20, v12")
    for s in range(8):
        a(f"v_fma_f32 v{32+2*s}, v{32+2*s}, s20, -v13")
    for s in range(8):
        a(f"v_exp_f32 v{32+2*s}, v{32+2*s}")
    a("v_mov_b32 v14, 0")
    a("v_mov_b32 v15, 0")
    for s in range(8):
        a(f"v_fmac_f32 v14, v{32+2*s}, v{33+2*s}")
        a(f"v_fmac_f32 v15, v{32+2*s}, v{48+s}")
    a("v_rcp_f32 v14, v14")
    a("v_mul_f32 v15, v15, v14")
    round_bf16(a, 15, 14)
    a("""
    v_lshlrev_b32 v14, 2, v0
    ds_write_b32 v14, v15
    s_waitcnt lgkmcnt(0)
    s_barrier
    v_lshlrev_b32 v14, 2, v5
    """)
    for i in range(16):
        a(f"v_mov_b32 v{56+i}, 0")
    for i in range(4):
        a(f"ds_read_b32 v{32+2*i}, v14 offset:{32*i}")
        a(f"ds_read_b32 v{33+2*i}, v14 offset:{512+32*i}")
    a("s_waitcnt lgkmcnt(0)")
    for i in range(4):
        unpack8(a, 16 + 4 * i, 40)
        for b in range(2):
            for j in range(8):
                a(f"v_fmac_f32 v{56+8*b+j}, v{32+2*i+b}, v{40+j}")
    a("v_lshlrev_b32 v14, 6, v0")
    for i in range(4):
        a(f"ds_write_b128 v14, v[{56+4*i}:{59+4*i}] offset:{1024+16*i}")
    a("""
    s_waitcnt lgkmcnt(0)
    s_barrier
    v_cmp_gt_u32 vcc, 128, v0
    s_and_saveexec_b64 s[18:19], vcc
    s_cbranch_execz Lo_skip
    v_lshrrev_b32 v9, 6, v0
    v_and_b32 v10, 63, v0
    v_lshrrev_b32 v11, 3, v10
    v_and_b32 v12, 7, v10
    v_lshlrev_b32 v11, 6, v11
    v_lshl_add_u32 v12, v9, 3, v12
    v_lshl_add_u32 v11, v12, 2, v11
    v_mov_b32 v13, 0
    """)
    for n in range(32):
        a(f"ds_read_b32 v{20+n}, v11 offset:{1024+512*n}")
    a("s_waitcnt lgkmcnt(0)")
    for n in range(32):
        a(f"v_add_f32 v13, v13, v{20+n}")
    a(f"""
    s_lshl_b32 s17, s12, 5
    s_add_u32 s17, s17, s11
    s_lshl_b32 s17, s17, 9
    s_add_u32 s17, s17, {OPART}
    v_lshlrev_b32 v14, 2, v0
    v_add_u32 v14, s17, v14
    global_store_dword v14, v13, s[8:9] sc1
    """)
    a.label("Lo_skip")
    a("""
    s_mov_b64 exec, s[18:19]
    s_waitcnt vmcnt(0)
    s_barrier
    v_cmp_eq_u32 vcc, 0, v0
    s_and_saveexec_b64 s[18:19], vcc
    s_cbranch_execz Lo_noat
    s_lshl_b32 s17, s12, 2
    v_mov_b32 v14, s17
    v_mov_b32 v15, 1
    global_atomic_add v16, v14, v15, s[30:31] sc0 sc1
    s_waitcnt vmcnt(0)
    v_mov_b32 v14, 0
    ds_write_b32 v14, v16 offset:512
    """)
    a.label("Lo_noat")
    a("""
    s_mov_b64 exec, s[18:19]
    s_waitcnt lgkmcnt(0)
    s_barrier
    v_mov_b32 v14, 0
    ds_read_b32 v16, v14 offset:512
    s_waitcnt lgkmcnt(0)
    v_readfirstlane_b32 s17, v16
    s_cmp_lg_u32 s17, 31
    s_cbranch_scc1 Lo_end
    v_lshrrev_b32 v2, 6, v0
    v_readfirstlane_b32 s17, v2
    s_cmp_ge_u32 s17, 2
    s_cbranch_scc1 Lo_end
    """)
    final_body(a, "s12", " sc1")
    a.label("Lo_end")
    a("s_endpgm")
    kd(a, name, 152)


def final_body(a, cg, sc):
    a("""
    v_and_b32 v1, 63, v0
    v_lshrrev_b32 v2, 6, v0
    v_mul_u32_u24 v3, 1152, v2
    v_lshl_add_u32 v3, v1, 1, v3
    v_lshlrev_b32 v4, 1, v1
    """)
    for i in range(9):
        a(f"global_load_ushort v{16+i}, v3, s[24:25] offset:{128*i}")
        a(f"global_load_ushort v{32+i}, v4, s[26:27] offset:{128*i}")
    a(f"""
    s_lshl_b32 s32, {cg}, 14
    s_add_u32 s32, s32, {OPART}
    v_lshlrev_b32 v5, 8, v2
    v_lshl_add_u32 v5, v1, 2, v5
    v_add_u32 v5, s32, v5
    s_lshl_b32 s33, {cg}, 8
    s_add_u32 s33, s33, {FFNP}
    v_mul_u32_u24 v6, 2304, v2
    v_lshl_add_u32 v6, v1, 2, v6
    v_add_u32 v6, s33, v6
    v_mov_b32 v7, 0
    v_mov_b32 v8, 0
    """)
    for n in range(32):
        a(f"global_load_dword v{48+n}, v5, s[8:9] offset:{512*(n%8)}{sc}")
        if n % 8 == 7:
            a("v_add_u32 v5, 4096, v5")
    for n in range(72):
        a(f"global_load_dword v{80+n}, v6, s[8:9]")
        a("v_add_u32 v6, 4608, v6")
    a("s_waitcnt vmcnt(0)")
    for n in range(32):
        a(f"v_add_f32 v7, v7, v{48+n}")
    for n in range(72):
        a(f"v_add_f32 v8, v8, v{80+n}")
    a("v_mov_b32 v9, 0")
    for i in range(9):
        a(f"v_lshlrev_b32 v{16+i}, 16, v{16+i}")
        a(f"v_lshlrev_b32 v{32+i}, 16, v{32+i}")
        a(f"v_mul_f32 v{16+i}, v{16+i}, v{32+i}")
        round_bf16(a, 16 + i, 10)
        a(f"v_add_f32 v9, v9, v{16+i}")
    a("""
    v_lshlrev_b32 v10, 2, v0
    ds_write_b32 v10, v9
    s_waitcnt lgkmcnt(0)
    s_barrier
    v_lshlrev_b32 v10, 8, v2
    v_mov_b32 v9, 0
    """)
    for half in range(2):
        for n in range(32):
            a(f"ds_read_b32 v{48+n}, v10 offset:{4*(32*half+n)}")
        a("s_waitcnt lgkmcnt(0)")
        for n in range(32):
            a(f"v_add_f32 v9, v9, v{48+n}")
    round_bf16(a, 9, 10)
    a(f"""
    s_mov_b32 s34, {f32hex(-math.log2(math.e))}
    v_mul_f32 v10, s34, v9
    v_exp_f32 v10, v10
    v_add_f32 v10, 1.0, v10
    v_rcp_f32 v10, v10
    """)
    round_bf16(a, 10, 11)
    round_bf16(a, 7, 11)
    round_bf16(a, 8, 11)
    a("v_mul_f32 v12, v10, v7")
    round_bf16(a, 12, 11)
    a("v_sub_f32 v13, 1.0, v10")
    round_bf16(a, 13, 11)
    a("v_mul_f32 v13, v13, v8")
    round_bf16(a, 13, 11)
    a("v_add_f32 v12, v12, v13")
    a("v_cvt_pk_bf16_f32 v12, v12, v12")
    a(f"""
    s_lshl_b32 s35, {cg}, 7
    v_mul_u32_u24 v14, 1152, v2
    v_lshl_add_u32 v14, v1, 1, v14
    v_add_u32 v14, s35, v14
    global_store_short v14, v12, s[28:29]
    """)


HEADER = f"""; gated GQA decode attention + GEGLU FFN, mixed by a sigmoid gate.  Generated by dev/gen.py
; Kernarg: x,k,v,wq,wo,Bx,wg,wu,wd,gate_w,out,dbg,ws (8 bytes each)
; @launch kernel=qproj_kernel grid=(192,1,1) block=(256,1,1) lds=16384
; @launch kernel={NAME}_kernel grid=(328,1,1) block=(512,1,1) lds=67584
; @launch kernel=oproj_kernel grid=(288,1,1) block=(256,1,1) lds=17408
.amdgcn_target "amdgcn-amd-amdhsa--gfx950"
.text
"""


def main():
    out = OUT
    for arg in sys.argv[1:]:
        k, v = arg.split("=")
        if k == "out":
            out = v
        elif k == "nt":
            CFG["nt"] = " nt" if v == "1" else ""
        else:
            CFG[k] = int(v)
    a = Asm()
    a.raw(HEADER)
    gen_qproj(a)
    gen_attn(a)
    gen_oproj(a)
    with open(out, "w") as f:
        f.write(a.text())
    print("wrote", out, len(a.text()), "bytes")


if __name__ == "__main__":
    main()
```
